```python
import torch

def _softmax(x, axis=-1):
    return torch.softmax(x, dim=axis)
def _gelu(x):
    return torch.nn.functional.gelu(x, approximate="tanh")
def _silu(x):
    return torch.nn.functional.silu(x)
def _sigmoid(x):
    return torch.sigmoid(x)
def _layernorm(x, axis=-1, eps=1e-5):
    m = x.mean(dim=axis, keepdim=True)
    v = x.var(dim=axis, keepdim=True, unbiased=False)
    return (x - m) / torch.sqrt(v + eps)
def _scatter_add(tgt, idx, src, axis=0):
    return tgt.clone().index_add_(axis, idx, src)
def _segment_sum(src, seg, n):
    out = torch.zeros((n,) + src.shape[1:], dtype=src.dtype)
    return out.index_add_(0, seg, src)
def _pad(x, pw):
    flat = tuple(v for pair in reversed(pw) for v in pair)
    return torch.nn.functional.pad(x, flat)

kernel_name = 'standalone__normalfloat_lut_nf4__prompt'

def setup_inputs():

    _w = (lambda a: (lambda t: t.to(torch.bfloat16) if t.is_floating_point() else t)(torch.as_tensor(a)))
    B, S, D, F = 1, 2048, 576, 4608
    G = 128 if 128 > 0 else D
    D = (D // G) * G
    ng = D // G
    qw = torch.randint(0, 16, (D, F)).to(torch.int64)
    return {
        "x": _w((lambda *s: torch.randn(*s, dtype=torch.bfloat16) * 0.05)(B, S, D)),
        "qw": _w(qw),
        "absmax": _w(torch.abs((lambda *s: torch.randn(*s, dtype=torch.bfloat16) * 0.05)(ng, F)).to(float) + 0.01),
    }

def reference(x, qw, absmax):
    NF4 = torch.as_tensor([
        -1.0, -0.6961928009986877, -0.5250730514526367, -0.39491748809814453,
        -0.28444138169288635, -0.18477343022823334, -0.09105003625154495, 0.0,
        0.07958029955625534, 0.16093020141124725, 0.24611230194568634,
        0.33791524171829224, 0.44070982933044434, 0.5626170039176941,
        0.7229568362236023, 1.0,
    ])
    D, F = qw.shape[0], qw.shape[1]
    ng = absmax.shape[0]
    G = D // ng
    w = (lambda x, dt: x.to(dt))(NF4[qw], x.dtype)
    s = (lambda x, n, axis: torch.repeat_interleave(x, n, dim=axis))(absmax, G, axis=0)
    w = w * s
    return torch.einsum("bsd,df->bsf", x, w)
```

```python
KNAME = "standalone__normalfloat_lut_nf4__prompt_kernel"
HEADER = """; Kernarg layout for this problem (48 bytes, ptrs only, base s[0:1]):
"""
class Asm:
    def __init__(self):
        self.lines = []
    def __call__(self, s):
        for l in s.strip("\n").split("\n"):
            if l.strip(): self.lines.append("    " + l.strip())
    def label(self, s):
        self.lines.append(s + ":")
    def raw(self, s):
        self.lines.append(s)
    def text(self):
        return "\n".join(self.lines) + "\n"

def wrap(body, grid, block, lds, vgpr=256, sgpr=102, accum=None, kname=KNAME, comments=""):
    if accum is None:
        accum = min(256, (vgpr + 3) // 4 * 4)
    return (HEADER + comments + f"; @launch grid=({grid},1,1) block=({block},1,1) lds={lds}\n"
        + '.amdgcn_target "amdgcn-amd-amdhsa--gfx950"\n.text\n'
        + f".globl {kname}\n.p2align 8\n.type {kname},@function\n{kname}:\n" + body
        + '.section .rodata,"a"\n.p2align 6\n'
        + f".amdhsa_kernel {kname}\n  .amdhsa_next_free_vgpr {vgpr}\n  .amdhsa_next_free_sgpr {sgpr}\n  .amdhsa_accum_offset {accum}\n"
        + "  .amdhsa_group_segment_fixed_size 0\n  .amdhsa_kernarg_size 48\n  .amdhsa_user_sgpr_count 2\n"
        + "  .amdhsa_user_sgpr_kernarg_segment_ptr 1\n  .amdhsa_system_sgpr_workgroup_id_x 1\n"
        + "  .amdhsa_float_denorm_mode_32 3\n"
        + ".end_amdhsa_kernel\n")

def srd(a, d, b, nbytes):
    a(f"s_mov_b32 s{d}, s{b}\ns_and_b32 s{d+1}, s{b+1}, 0xffff\ns_mov_b32 s{d+2}, {nbytes}\ns_mov_b32 s{d+3}, 0x00020000")
```

```python
import sys
from asmlib import *

NF4B = [0xbf80,0xbf32,0xbf06,0xbeca,0xbe92,0xbe3d,0xbdba,0x0,0x3da3,0x3e25,0x3e7c,0x3ead,0x3ee2,0x3f10,0x3f39,0x3f80]
R1 = 12
TAB, WB, XA = 0, 16384, 49152
SLOT = R1 * 2048
SPARE = 114688 - 3 * SLOT
def ring(t): return XA + SPARE + SLOT * ((t + 1) % 3)
LDS_BYTES = 163840

class Q:
    def __init__(self, a, name, mx):
        self.a, self.name, self.mx = a, name, mx
        self.n = 0
        self.done = 0
    def issue(self):
        self.n += 1
        return self.n
    def wait(self, tok):
        if tok <= self.done: return
        y = self.n - tok
        assert y <= self.mx, (self.name, y)
        self.a(f"s_waitcnt {self.name}({y})")
        self.done = tok
    def drain(self): self.wait(self.n)

def gen(order="nat", stamps=False, prefetch=True, stflag="nt", prio_p=1, prio_c=0):
    a = Asm()
    a("s_load_dwordx2 s[24:25], s[0:1], 16")
    a("s_load_dwordx2 s[20:21], s[0:1], 8")
    a("s_load_dwordx2 s[16:17], s[0:1], 0")
    a("s_load_dwordx2 s[28:29], s[0:1], 24")
    if stamps:
        a("s_load_dwordx2 s[32:33], s[0:1], 40\ns_memrealtime s[64:65]\ns_memtime s[66:67]")
        a("s_mov_b32 s34, 0x100000\ns_mov_b32 s35, 0x00020000")
    a("""
    v_readfirstlane_b32 s42, v0
    s_mov_b32 s18, 2097152
    s_mov_b32 s19, 0x00020000
    s_mov_b32 s22, 9437184
    s_mov_b32 s23, 0x00020000
    s_mov_b32 s26, 36864
    s_mov_b32 s27, 0x00020000
    s_mov_b32 s30, 18874368
    s_mov_b32 s31, 0x00020000
    s_lshr_b32 s42, s42, 6
    s_and_b32 s3, s2, 1
    s_lshl_b32 s3, s3, 5
    s_lshr_b32 s4, s2, 3            ; idx
    s_add_u32 s3, s3, s4            ; u
    s_cmp_ge_u32 s2, 256
    s_cselect_b32 s3, 63, s3
    s_cmp_ge_u32 s3, 63
    s_cbranch_scc1 L_end
    s_mul_i32 s5, s3, 37
    s_lshr_b32 s5, s5, 8            ; sl = u/7
    s_mul_i32 s6, s5, 7
    s_sub_u32 s37, s3, s6           ; ms
    s_bfe_u32 s6, s2, 0x20001       ; p
    s_mul_i32 s6, s6, 9
    s_add_u32 s36, s6, s5           ; strip
    s_mul_i32 s38, s37, 18
    s_cmp_ge_u32 s37, 4
    s_addc_u32 s38, s38, 0          ; rt0
    s_cmp_eq_u32 s37, 3
    s_cselect_b32 s39, 1, 0
    s_cmp_eq_u32 s37, 6
    s_cselect_b32 s39, 1, s39
    v_and_b32 v1, 63, v0            ; lane
    s_cmp_ge_u32 s42, 4
    s_cbranch_scc1 L_prod
    """)
    nst = [0]
    def stamp(base):
        if stamps:
            r = 68 + 2 * nst[0]; nst[0] += 1
            assert r <= 100
            a(f"s_memtime s[{r}:{r+1}]")
    def write_stamps(slot0, lab):
        if not stamps: return
        a("s_memrealtime s[62:63]\ns_waitcnt lgkmcnt(0)")
        a(f"s_and_b32 s3, s42, 3\ns_cmp_lg_u32 s3, 0\ns_cbranch_scc1 {lab}")
        a("s_mov_b64 exec, 1\ns_lshl_b32 s3, s2, 8\nv_mov_b32 v1, s3")
        if slot0 == 0:
            a("v_mov_b32 v2, s64\nv_mov_b32 v3, s65\nbuffer_store_dwordx2 v[2:3], v1, s[32:35], 0 offen\ns_nop 1")
        a(f"v_mov_b32 v2, s62\nv_mov_b32 v3, s63\nbuffer_store_dwordx2 v[2:3], v1, s[32:35], 0 offen offset:{8 if slot0 == 0 else 16*8}\ns_nop 1")
        for i in range(14):
            r = 68 + 2 * min(i, nst[0] - 1)
            a(f"s_sub_u32 s4, s{r}, s66\ns_subb_u32 s5, s{r+1}, s67\ns_add_u32 s4, s4, s64\ns_addc_u32 s5, s5, s65")
            a(f"v_mov_b32 v2, s4\nv_mov_b32 v3, s5\nbuffer_store_dwordx2 v[2:3], v1, s[32:35], 0 offen offset:{(slot0 + 2 + i - (1 if slot0 else 0))*8}\ns_nop 1")
        a.label(lab)

    lg = Q(a, "lgkmcnt", 15); vm = Q(a, "vmcnt", 63)
    a("""
    v_and_b32 v2, 31, v1
    v_lshrrev_b32 v3, 5, v1
    v_lshlrev_b32 v2, 3, v2
    v_lshl_add_u32 v2, v3, 2, v2     ; c4*8 + ih*4
    s_mul_i32 s5, s42, 9216
    s_lshl_b32 s6, s36, 8
    s_add_u32 s5, s5, s6
    s_waitcnt lgkmcnt(0)
    buffer_load_dword v8, v2, s[24:27], s5 offen
    """)
    t_abs = vm.issue()
    if prefetch:
        a("s_getpc_b64 s[6:7]")
        a.label("L_pc")
        a(f"s_and_b32 s8, s4, 7\ns_lshl_b32 s8, s8, 2\ns_add_u32 s8, s8, s42\ns_lshl_b32 s8, s8, 10\ns_min_u32 s8, s8, (L_end-{KNAME})&0xfffffc00")
        a(f"s_sub_u32 s6, s6, L_pc-{KNAME}\ns_subb_u32 s7, s7, 0\ns_add_u32 s6, s6, s8\ns_addc_u32 s7, s7, 0")
        a("v_lshlrev_b32 v4, 4, v1\nv_mov_b32 v5, s7\nv_add_co_u32 v4, vcc, s6, v4\ns_nop 1\nv_addc_co_u32 v5, vcc, 0, v5, vcc")
        a("global_load_dwordx4 v[124:127], v[4:5], off")
        vm.issue()
    if prio_c: a(f"s_setprio {prio_c}")
    a(f"""
    v_and_b32 v10, 15, v1            ; m / pos
    v_lshrrev_b32 v11, 4, v1         ; g
    v_lshrrev_b32 v12, 1, v10        ; (m>>1)&7
    v_xor_b32 v12, v12, v11
    v_lshlrev_b32 v12, 4, v12
    v_lshl_add_u32 v2, v10, 7, v12   ; m*128 + (g^swz)*16
    v_add_u32 v2, {ring(0)}, v2
    v_xor_b32 v3, 64, v2
    v_and_b32 v12, 3, v10            ; i'
    v_lshrrev_b32 v13, 2, v10        ; g'
    v_lshlrev_b32 v13, 4, v13
    v_lshl_add_u32 v13, v12, 6, v13
    v_lshl_add_u32 v13, v11, 8, v13
    s_lshl_b32 s5, s42, 12
    v_add_u32 v4, s5, v13
    s_lshl_b32 s6, s42, 2
    v_add_u32 v12, s6, v11           ; chunk
    v_and_b32 v13, 7, v10
    v_xor_b32 v12, v12, v13
    v_lshlrev_b32 v12, 4, v12
    v_lshl_add_u32 v5, v10, 8, v12   ; obase
    v_lshl_add_u32 v6, v1, 2, s5
    """)
    vm.wait(t_abs)
    a("v_lshlrev_b32 v9, 16, v8\nv_and_b32 v8, 0xffff0000, v8")
    for q in range(16):
        r = 12 + (q % 4) * 2
        c = NF4B[q] << 16
        a(f"v_mul_f32 v{r}, {hex(c)}, v9\nv_mul_f32 v{r+1}, {hex(c)}, v8\nv_cvt_pk_bf16_f32 v{r}, v{r}, v{r+1}")
        a(f"ds_write_b32 v6, v{r} offset:{TAB + q*256}")
        lg.issue()
        if lg.n - lg.done > 12: lg.wait(lg.n - 8)
    lg.drain()
    a("s_barrier")
    stamp(0)
    vm.drain()

    ACC = 32
    def acc1(rt): return ACC + 8 * rt
    frs = []
    for t in range(8):
        seq = [(rt, kk) for rt in range(R1) for kk in range(2)]
        for (rt, kk) in seq:
            frs.append(dict(ph=1, grp=t, t=t, kk=kk, acc=acc1(rt), off=rt*2048, first=(t == 0 and kk == 0), last=(t == 7 and kk == 1), oslot=rt))
    for p in range(7):
        for t in range(8):
            for kk in range(2):
                frs.append(dict(ph=2, grp=8+p, t=t, kk=kk, acc=acc1(p % 2), off=t*2048, first=(t == 0 and kk == 0), last=(t == 7 and kk == 1), oslot=p))
    n1 = 8 * R1 * 2
    def buf(n):
        if n < n1: return 8 + 4 * (n % 6)
        return acc1(2) + 4 * ((n - n1) % 8)
    tok = {}; wtok = {}
    issued = [0]
    open_grp = [-1]
    cur_base = [ring(0)]
    def grp_base(g): return ring(g) if g < 8 else XA + 16384 * (g - 8)
    icount = [0]
    def issue_reads(n_done, maxn=99):
        c = 0
        while issued[0] < len(frs) and c < maxn:
            n = issued[0]; f = frs[n]
            if f["grp"] > open_grp[0]: break
            prev = n - 6 if n < n1 else (n - 8 if n - 8 >= n1 else -1)
            if prev > n_done: break
            if lg.n - lg.done >= 14: break
            gb = grp_base(f["grp"])
            if gb != cur_base[0]:
                d = gb - cur_base[0]
                a(f"v_add_u32 v2, {d & 0xffffffff:#x}, v2\nv_add_u32 v3, {d & 0xffffffff:#x}, v3")
                cur_base[0] = gb
            b = buf(n)
            a(f"ds_read_b128 v[{b}:{b+3}], v{2 + f['kk']} offset:{f['off']}")
            tok[n] = lg.issue(); issued[0] += 1; c += 1
    def open_group(g):
        a("s_barrier")
        if g <= 9 or g == 13: stamp(0)
        open_grp[0] = g
        if g < 8:
            for kk in range(2):
                for j in range(2):
                    r = 16 * g + 8 * kk + 4 * j
                    a(f"ds_read_b128 a[{r}:{r+3}], v4 offset:{WB + (g & 1) * 16384 + kk * 2048 + j * 1024}")
                    wtok[(g, kk, j)] = lg.issue()
    pend = []
    wr_tok = {}
    def do_epi(force=False):
        while pend:
            (li, acc, osl, ming) = pend[0]
            if open_grp[0] < ming: return
            dist = len(a.lines) - li
            if dist < 9:
                if not force: return
                a(f"s_nop {9 - dist}")
            a(f"v_cvt_pk_bf16_f32 v{acc}, v{acc}, v{acc+1}\nv_cvt_pk_bf16_f32 v{acc+1}, v{acc+2}, v{acc+3}")
            a(f"v_cvt_pk_bf16_f32 v{acc+2}, v{acc+5}, v{acc+4}\nv_cvt_pk_bf16_f32 v{acc+3}, v{acc+7}, v{acc+6}")
            if lg.n - lg.done >= 15: lg.wait(lg.n - 13)
            a(f"ds_write_b128 v5, v[{acc}:{acc+3}] offset:{osl * 4096}")
            wr_tok["last"] = lg.issue()
            pend.pop(0)
            if not force: return
    def finish(lab):
        do_epi(force=True)
        lg.drain()
        a("s_barrier")
        stamp(0)
        write_stamps(0, lab)
        a("s_endpgm")
    open_group(0)
    issue_reads(-1)
    N = len(frs)
    for n, f in enumerate(frs):
        g = f["grp"]
        glast = max(i for i in range(N) if frs[i]["grp"] == g)
        ahead = 2 if g < 8 else 7
        if n == glast - ahead + 1 and g + 1 <= 14:
            if g < 8:
                if g == 7:
                    assert all(p[2] >= 8 for p in pend), pend
                lg.drain()
            else:
                assert not pend, (g, pend)
                lg.wait(wr_tok["last"])
            open_group(g + 1)
            issue_reads(n - 1)
        if n == glast - ahead + 1 and g == 14:
            assert not pend
            lg.wait(wr_tok["last"])
            a("s_barrier")
        lg.wait(tok[n])
        if f["ph"] == 1: lg.wait(wtok[(g, f["kk"], 1)])
        b = buf(n)
        for j in range(2):
            r = 16 * f["t"] + 8 * f["kk"] + 4 * j
            d = f["acc"] + 4 * j
            c = "0" if f["first"] else f"v[{d}:{d+3}]"
            a(f"v_mfma_f32_16x16x32_bf16 v[{d}:{d+3}], a[{r}:{r+3}], v[{b}:{b+3}], {c}")
        if f["last"]:
            ming = 8 if (f["ph"] == 1 and f["oslot"] >= 8) else 0
            pend.append((len(a.lines), f["acc"], f["oslot"], ming))
        issue_reads(n, maxn=2)
        if n == glast and g == 13:
            a("s_cmp_eq_u32 s39, 0\ns_cbranch_scc0 L_c19")
            sv = (lg.n, lg.done, list(pend), nst[0])
            finish("L_cs1")
            lg.n, lg.done, pend[:], nst[0] = sv[0], sv[1], [(len(a.lines), p[1], p[2], p[3]) for p in sv[2]], sv[3]
            a.label("L_c19")
        else:
            do_epi()
    finish("L_cs2")

    a.raw(".p2align 6")
    a.label("L_prod")
    nst[0] = 0
    lg = Q(a, "lgkmcnt", 15); vm = Q(a, "vmcnt", 63)
    QB = [64, 96]; WV = 32; LT = 48; VQ = 8; VX = 16
    tabs = {
      "nat":  [[0,1,2,3,4,5,6,7]]*4,
      "tabA": [[0,1,4,2,3,5,6,7],[1,0,2,5,3,4,6,7],[2,0,1,3,6,4,5,7],[0,3,1,2,4,7,5,6]],
      "tabC": [[0,1,2,4,3,5,6,7],[1,0,2,3,5,4,6,7],[0,2,1,3,4,6,5,7],[1,0,3,2,4,5,7,6]],
      "rot4": [[0,1,2,3,4,5,6,7],[1,2,3,0,5,6,7,4],[2,3,0,1,6,7,4,5],[3,0,1,2,7,4,5,6]],
    }[order]
    pk = [sum(st << (4*t) for t, st in enumerate(o)) for o in tabs]
    a("s_sub_u32 s43, s42, 4")
    a(f"s_mov_b32 s41, {pk[0]:#x}")
    if len(set(pk)) > 1:
        a("s_add_u32 s5, s36, s37\ns_and_b32 s5, s5, 3")
        for c in range(1, 4): a(f"s_cmp_eq_u32 s5, {c}\ns_cselect_b32 s41, {pk[c]:#x}, s41")
    a(f"""
    v_and_b32 v2, 31, v1             ; c4
    v_lshrrev_b32 v3, 5, v1          ; h
    v_mul_u32_u24 v4, 147456, v3
    v_lshl_add_u32 v{VQ}, v2, 4, v4
    s_lshl_b32 s44, s36, 9
    s_mul_i32 s5, s43, {16*18432}
    s_add_u32 s44, s44, s5           ; q base
    s_and_b32 s5, s41, 7
    s_mul_i32 s5, s5, {64*18432}
    s_add_u32 s46, s44, s5
    """)
    for e in range(1, 8): a(f"v_add_u32 v{VQ+e}, {e*18432}, v{VQ}")
    a("s_waitcnt lgkmcnt(0)")
    if prio_p: a(f"s_setprio {prio_p}")
    qtok = {}
    def qload(t, e):
        d = QB[t & 1] + 4 * e
        a(f"buffer_load_dwordx4 v[{d}:{d+3}], v{VQ+e}, s[20:23], s46 offen")
        qtok[(t, e)] = vm.issue()
    for e in range(8): qload(0, e)
    a(f"""
    v_lshrrev_b32 v4, 3, v1          ; r
    v_and_b32 v5, 7, v1              ; s
    v_lshrrev_b32 v6, 1, v4
    v_xor_b32 v5, v5, v6
    v_lshlrev_b32 v5, 4, v5
    v_lshl_add_u32 v{VX}, v4, 10, v5
    """)
    for i in range(1, 6):
        a(f"v_add_u32 v{VX+i}, {8192*i - 1024*(i & 3)}, v{VX}")
        if i & 1: a(f"v_xor_b32 v{VX+i}, 64, v{VX+i}")
    a(f"""
    s_lshl_b32 s45, s38, 14
    s_mul_i32 s5, s43, {48*1024}
    s_add_u32 s45, s45, s5           ; x base
    s_mul_i32 s48, s43, 6144
    """)
    xtok = {}
    def xsetup(t):
        a(f"s_bfe_u32 s5, s41, {0x30000 + 4*t:#x}\ns_lshl_b32 s5, s5, 7\ns_add_u32 s47, s45, s5")
    def xload(t, i):
        if i in (0, 4): a(f"s_add_u32 m0, s48, {ring(t) + 1024*i}\ns_nop 0")
        a(f"buffer_load_dwordx4 v{VX+i}, s[16:19], s47 offen offset:{1024*(i & 3)} lds")
        xtok[t] = vm.issue()
    xsetup(0)
    for i in range(6): xload(0, i)
    a(f"""
    v_lshrrev_b32 v4, 3, v2          ; wn
    v_lshlrev_b32 v4, 12, v4
    v_and_b32 v5, 1, v2              ; j
    v_lshl_add_u32 v4, v5, 10, v4
    v_bfe_u32 v6, v2, 1, 2           ; g'
    v_lshl_add_u32 v4, v6, 4, v4
    v_lshl_add_u32 v4, v3, 8, v4     ; + h*256
    s_lshr_b32 s5, s43, 1
    s_lshl_b32 s5, s5, 11
    s_and_b32 s6, s43, 1
    s_lshl_b32 s6, s6, 9
    s_add_u32 s5, s5, s6
    v_add_u32 v4, s5, v4
    v_lshl_add_u32 v22, v5, 6, v4
    v_xor_b32 v23, 64, v22
    v_lshlrev_b32 v25, 2, v2
    v_lshrrev_b32 v4, 4, v1          ; r
    s_lshl_b32 s5, s43, 2
    v_add_u32 v4, s5, v4             ; row
    v_and_b32 v5, 15, v1             ; c
    v_and_b32 v6, 7, v4
    v_xor_b32 v6, v6, v5
    v_lshlrev_b32 v6, 4, v6
    v_lshl_add_u32 v26, v4, 8, v6
    v_mul_u32_u24 v4, 9216, v4
    v_lshl_add_u32 v27, v5, 4, v4
    s_mul_i32 s50, s38, {16*9216}
    s_lshl_b32 s5, s36, 8
    s_add_u32 s50, s50, s5
    s_lshl_b32 s5, s43, 3
    s_lshr_b32 s5, s41, s5
    s_and_b32 s6, s5, 7
    s_lshl_b32 s6, s6, 7
    s_bfe_u32 s5, s5, 0x30004
    s_lshl_b32 s5, s5, 7
    s_add_u32 s7, s38, {R1}
    s_lshl_b32 s7, s7, 14
    s_add_u32 s52, s7, s6            ; phase-2 x soffset tt=0
    s_add_u32 s53, s7, s5            ; tt=1
    s_lshl_b32 s51, s43, 12          ; lds wave offset phase 2
    """)
    ptok = {}
    def pload(p, i):
        tt, hh = i >> 1, i & 1
        if hh == 0:
            a(f"s_add_u32 m0, s51, {XA + 16384*p + 2048*tt}")
            a(f"s_add_u32 s54, s{52+tt}, {16384*p}")
        a(f"buffer_load_dwordx4 v{VX+hh}, s[16:19], s54 offen offset:{1024*hh} lds")
        ptok[p] = vm.issue()
    a("s_barrier")
    stamp(0)
    for t in range(8):
        a(f"s_bfe_u32 s5, s41, {0x20000 + 4*t + 1:#x}\ns_lshl_b32 s5, s5, 12\nv_add_u32 v24, s5, v25")
        if t < 7:
            a(f"s_bfe_u32 s5, s41, {0x30000 + 4*(t+1):#x}\ns_mul_i32 s5, s5, {64*18432}\ns_add_u32 s46, s44, s5")
            xsetup(t + 1)
            vl = [(lambda e=e: qload(t + 1, e)) for e in range(8)] + [(lambda i=i: xload(t + 1, i)) for i in range(6)]
        else:
            vl = [(lambda p=p, i=i: pload(p, i)) for p in range(3) for i in range(4)]
        qb = QB[t & 1]
        ltok = {}
        def ors(pr):
            lg.wait(ltok[2 * pr + 1])
            for i in range(4):
                a(f"v_or_b32 v{WV + 4*i + pr}, v{WV + 4*i + pr}, v{LT + 4*pr + i}")
        for e in range(8):
            vl.pop(0)()
            vm.wait(qtok[(t, e)])
            for i in range(4):
                a(f"v_lshl_add_u32 v{qb + 4*e + i}, v{qb + 4*e + i}, 8, v24")
            for i in range(4):
                off = TAB + (i >> 1) * 128 + (i & 1) * 2
                if e & 1: a(f"ds_read_u16_d16_hi v{LT + 4*(e >> 1) + i}, v{qb + 4*e + i} offset:{off}")
                else:     a(f"ds_read_u16 v{WV + 4*i + (e >> 1)}, v{qb + 4*e + i} offset:{off}")
                ltok[e] = lg.issue()
            if e in (2, 4, 6): ors(e // 2 - 1)
        vl.pop(0)()
        ors(3)
        for i in range(4):
            a(f"ds_write_b128 v{22 + (i & 1)}, v[{WV + 4*i}:{WV + 4*i + 3}] offset:{WB + (t & 1) * 16384 + (i >> 1) * 128}")
            lg.issue()
            if i == 1: vl.pop(0)()
        while vl: vl.pop(0)()
        vm.wait(xtok[t])
        lg.drain()
        a("s_barrier")
        stamp(0)
    for p in (3, 4):
        for i in range(4): pload(p, i)
    vm.wait(ptok[0])
    a("s_barrier")
    stamp(0)
    OB = 64
    rtok = {}
    def oread(slot, idx):
        r = OB + 4 * (idx % 16)
        a(f"ds_read_b128 v[{r}:{r+3}], v26 offset:{slot * 4096}")
        rtok[idx] = lg.issue()
    def ostore(idx):
        r = OB + 4 * (idx % 16)
        a(f"s_add_u32 s55, s50, {idx * 16 * 9216}")
        lg.wait(rtok[idx])
        a(f"buffer_store_dwordx4 v[{r}:{r+3}], v27, s[28:31], s55 offen {stflag}")
        vm.issue()
    for s in range(8): oread(s, s)
    for s in range(5): ostore(s)
    lg.drain(); vm.wait(ptok[1]); a("s_barrier")
    stamp(0)
    for s in range(8, 12): oread(s, s)
    ostore(5)
    for i in range(4): pload(5, i)
    ostore(6)
    lg.drain(); vm.wait(ptok[2]); a("s_barrier")
    oread(0, 12)
    ostore(7)
    for i in range(4): pload(6, i)
    ostore(8)
    lg.drain(); vm.wait(ptok[3]); a("s_barrier")
    oread(1, 13)
    for s in range(9, 14): ostore(s)
    lg.drain(); vm.wait(ptok[4]); a("s_barrier")
    oread(2, 14); ostore(14)
    vm.wait(ptok[5]); a("s_barrier")
    stamp(0)
    oread(3, 15); ostore(15)
    vm.wait(ptok[6]); a("s_barrier")
    oread(4, 16); ostore(16)
    a("s_barrier")
    oread(5, 17); ostore(17)
    a("s_cmp_eq_u32 s39, 0\ns_cbranch_scc1 L_pdone")
    a("s_barrier")
    oread(6, 18); ostore(18)
    a.label("L_pdone")
    if stamps:
        stamp(0)
        a("s_waitcnt vmcnt(0)")
        stamp(0)
    write_stamps(16, "L_ps")
    a.label("L_end")
    a("s_endpgm")
    a.raw(".fill 256, 4, 0xbf800000")
    return wrap(a.text(), 256, 512, LDS_BYTES, vgpr=256, sgpr=102, accum=128)

if __name__ == "__main__":
    import argparse
    ap = argparse.ArgumentParser()
    ap.add_argument("-o", default="k1.s"); ap.add_argument("--order", default="nat"); ap.add_argument("--stamps", action="store_true")
    ap.add_argument("--nopf", action="store_true"); ap.add_argument("--st", default="nt"); ap.add_argument("--pp", type=int, default=1); ap.add_argument("--pc", type=int, default=0)
    x = ap.parse_args()
    open(x.o, "w").write(gen(order=x.order, stamps=x.stamps, prefetch=not x.nopf, stflag=x.st, prio_p=x.pp, prio_c=x.pc))
```

```python
import sys
from asmlib import *

NF4B = [0xbf80,0xbf32,0xbf06,0xbeca,0xbe92,0xbe3d,0xbdba,0x0,0x3da3,0x3e25,0x3e7c,0x3ead,0x3ee2,0x3f10,0x3f39,0x3f80]
R1 = 12
TAB, WB, XA = 0, 16384, 49152
SLOT = R1 * 2048
SPARE = 114688 - 3 * SLOT
def ring(t): return XA + SPARE + SLOT * ((t + 1) % 3)
def xtile(p): return XA + 16384 * p if p <= 4 else (TAB if p == 5 else XA + 98304)
def oslot(s):
    if s < 4: return WB + 4096 * s
    if s < 6: return XA + 81920 + 4096 * (s - 4)
    if s < 10: return WB + 16384 + 4096 * (s - 6)
    return XA + 90112 + 4096 * (s - 10)
OHI = 131072
LDS_BYTES = 163840

class Q:
    def __init__(self, a, name, mx):
        self.a, self.name, self.mx = a, name, mx
        self.n = 0; self.done = 0
    def issue(self):
        self.n += 1
        return self.n
    def need(self, tok): return tok > self.done
    def wait(self, tok):
        if tok <= self.done: return False
        y = self.n - tok
        assert y <= self.mx, (self.name, y)
        self.a(f"s_waitcnt {self.name}({y})")
        self.done = tok
        return True
    def drain(self): self.wait(self.n)

DEF = dict(order="d2", xrot=7, stamps=0, prefetch=1, st="nt", pp=1, pc=0, lead=12, defer=2, n7=8, G2=4, prot=1,
           sched="LLLLLLLLLL,SSLLSLL,SLLSLLS,SLLSLLS,SLLSS,SSS,SS,S")

def gen(**kw):
    o = dict(DEF); o.update(kw)
    stamps = o["stamps"]
    a = Asm()
    a("s_load_dwordx2 s[24:25], s[0:1], 16")
    a("s_load_dwordx2 s[20:21], s[0:1], 8")
    a("s_load_dwordx2 s[16:17], s[0:1], 0")
    a("s_load_dwordx2 s[28:29], s[0:1], 24")
    if stamps:
        a("s_load_dwordx2 s[32:33], s[0:1], 40\ns_memrealtime s[64:65]\ns_memtime s[66:67]")
        a("s_mov_b32 s34, 0x100000\ns_mov_b32 s35, 0x00020000")
    a("""
    v_readfirstlane_b32 s42, v0
    s_mov_b32 s19, 0x00020000
    s_mov_b32 s23, s19
    s_mov_b32 s27, s19
    s_mov_b32 s31, s19
    s_mov_b32 s18, 2097152
    s_mov_b32 s22, 9437184
    s_mov_b32 s26, 36864
    s_mov_b32 s30, 18874368
    s_lshr_b32 s42, s42, 6
    s_and_b32 s3, s2, 1
    s_lshl_b32 s3, s3, 5
    s_lshr_b32 s4, s2, 3            ; idx
    s_add_u32 s3, s3, s4            ; u
    s_cmp_ge_u32 s4, 32
    s_cselect_b32 s3, 63, s3
    s_cmp_ge_u32 s3, 63
    s_cbranch_scc1 L_end
    s_mul_i32 s40, s3, 37
    s_lshr_b32 s40, s40, 8          ; sl = u/7
    s_mul_i32 s6, s40, 7
    s_sub_u32 s37, s3, s6           ; ms
    s_bfe_u32 s6, s2, 0x20001       ; p
    s_mul_i32 s6, s6, 9
    s_add_u32 s36, s6, s40          ; strip
    v_and_b32 v2, 31, v0            ; c4
    v_bfe_u32 v3, v0, 5, 1          ; h
    v_and_b32 v1, 63, v0            ; lane
    s_cmp_ge_u32 s42, 4
    s_cbranch_scc1 L_prod
    v_lshlrev_b32 v2, 3, v2
    v_lshl_add_u32 v2, v3, 2, v2     ; c4*8 + ih*4
    s_mul_i32 s5, s42, 9216
    s_lshl_b32 s6, s36, 8
    s_add_u32 s5, s5, s6
    s_waitcnt lgkmcnt(0)
    buffer_load_dword v8, v2, s[24:27], s5 offen
    """)
    if o["prefetch"]:
        a("s_getpc_b64 s[6:7]")
        a.label("L_pc")
        a(f"s_and_b32 s8, s4, 7\ns_lshl_b32 s8, s8, 2\ns_add_u32 s8, s8, s42\ns_lshl_b32 s8, s8, 10\ns_min_u32 s8, s8, (L_last-{KNAME})&0xfffffc00")
        a(f"s_sub_u32 s8, s8, L_pc-{KNAME}\ns_ashr_i32 s9, s8, 31\ns_add_u32 s6, s6, s8\ns_addc_u32 s7, s7, s9")
        a("v_lshlrev_b32 v4, 4, v1\nv_mov_b32 v5, s7\nv_add_co_u32 v4, vcc, s6, v4\ns_nop 1\nv_addc_co_u32 v5, vcc, 0, v5, vcc")
        a("global_load_dwordx4 v[124:127], v[4:5], off")
    a("s_branch L_cons")

    nst = [0]
    def stamp():
        if stamps:
            r = 68 + 2 * nst[0]; nst[0] += 1
            assert r <= 94
            a(f"s_memtime s[{r}:{r+1}]")
    def barrier(st=False):
        if st and stamps == 2: stamp()
        a("s_barrier")
        if st and stamps == 1: stamp()
    def write_stamps(slot0, lab):
        if not stamps: return
        a("s_memrealtime s[62:63]\ns_waitcnt lgkmcnt(0)")
        a(f"s_and_b32 s3, s42, 3\ns_cmp_lg_u32 s3, 0\ns_cbranch_scc1 {lab}")
        a("s_mov_b64 exec, 1\ns_lshl_b32 s3, s2, 8\nv_mov_b32 v1, s3")
        if slot0 == 0:
            a("v_mov_b32 v2, s64\nv_mov_b32 v3, s65\nbuffer_store_dwordx2 v[2:3], v1, s[32:35], 0 offen\ns_nop 1")
        a(f"v_mov_b32 v2, s62\nv_mov_b32 v3, s63\nbuffer_store_dwordx2 v[2:3], v1, s[32:35], 0 offen offset:{8 if slot0 == 0 else 16*8}\ns_nop 1")
        for i in range(14):
            r = 68 + 2 * min(i, nst[0] - 1)
            a(f"s_sub_u32 s4, s{r}, s66\ns_subb_u32 s5, s{r+1}, s67\ns_add_u32 s4, s4, s64\ns_addc_u32 s5, s5, s65")
            a(f"v_mov_b32 v2, s4\nv_mov_b32 v3, s5\nbuffer_store_dwordx2 v[2:3], v1, s[32:35], 0 offen offset:{(slot0 + 2 + i - (1 if slot0 else 0))*8}\ns_nop 1")
        a.label(lab)

    a.label("L_prod")
    lg = Q(a, "lgkmcnt", 15); vm = Q(a, "vmcnt", 63)
    QB = [64, 96]; WV = 32; LT = 48; VQ = 8; VX = 16
    a("s_sub_u32 s43, s42, 4")
    if o["order"] == "d2":
        a("""
        s_lshl_b32 s5, s37, 2
        s_sub_u32 s5, s5, 4
        s_lshl_b32 s5, 270, s5
        s_cmp_eq_u32 s37, 0
        s_cselect_b32 s5, 15, s5
        s_sub_u32 s41, 0x76543210, s5
        """)
    elif o["order"] == "d1":
        a("s_lshl_b32 s5, s37, 2\ns_lshl_b32 s5, 15, s5\ns_sub_u32 s41, 0x76543210, s5")
    else:
        a("s_mov_b32 s41, 0x76543210")
    if o["xrot"]:
        a(f"s_and_b32 s5, s2, {o['xrot']}\ns_mul_i32 s5, s5, 0x11111111\ns_add_u32 s41, s41, s5")
    a(f"""
    v_mul_u32_u24 v4, 147456, v3
    v_lshl_add_u32 v{VQ}, v2, 4, v4
    s_lshl_b32 s44, s36, 9
    s_mul_i32 s5, s43, {16*18432}
    s_add_u32 s44, s44, s5           ; q base
    s_movk_i32 s7, 18432
    """)
    for e in range(1, 8): a(f"v_add_u32 v{VQ+e}, s7, v{VQ+e-1}")
    qtok = {}; xtok = {}; ptok = {}
    def qload(t, e):
        if e == 0:
            a(f"s_bfe_u32 s5, s41, {0x30000 + 4*t:#x}\ns_mul_i32 s5, s5, {64*18432}\ns_add_u32 s46, s44, s5")
            if t == 0:
                a("s_waitcnt lgkmcnt(0)")
        d = QB[t & 1] + 4 * e
        a(f"buffer_load_dwordx4 v[{d}:{d+3}], v{VQ+e}, s[20:23], s46 offen")
        qtok[(t, e)] = vm.issue()
    bar_done = [-2]
    def xload(t, i):
        assert t < 3 or bar_done[0] >= t - 2, (t, bar_done)
        if i == 0:
            a(f"s_add_u32 m0, s48, {ring(t)}")
            a(f"s_bfe_u32 s5, s41, {0x30000 + 4*t:#x}\ns_lshl_b32 s5, s5, 7\ns_add_u32 s47, s45, s5")
        if i == 4: a(f"s_add_u32 m0, s48, {ring(t) + 4096}\ns_nop 0")
        a(f"buffer_load_dwordx4 v{VX+i}, s[16:19], s47 offen offset:{1024*(i & 3)} lds")
        xtok[t] = vm.issue()
    PAV = {0: -2, 1: -2, 2: 6, 3: 6, 4: 7, 5: 7, 6: 8}
    def pload(p, i):
        assert bar_done[0] >= PAV[p], (p, bar_done)
        tt, hh = i >> 1, i & 1
        if hh == 0:
            a(f"s_add_u32 m0, s51, {xtile(p) + 2048*tt}")
            if p < 6: a(f"s_add_u32 s54, s{52+tt}, s{56+p}")
            else:     a(f"s_add_u32 s54, s{52+tt}, {16384*6}")
        a(f"buffer_load_dwordx4 v{VX+hh}, s[16:19], s54 offen offset:{1024*hh} lds")
        ptok[p] = vm.issue()
    vl = []
    for t in range(8):
        vl += [("q", t, e) for e in range(8)] + [("x", t, i) for i in range(6)]
    for p in range(7): vl += [("p", p, i) for i in range(4)]
    def V(n=1):
        for _ in range(n):
            if not vl: return
            k, i, j = vl.pop(0)
            {"q": qload, "x": xload, "p": pload}[k](i, j)
    V(8)
    if o["pp"]: a(f"s_setprio {o['pp']}")
    a(f"""
    v_lshrrev_b32 v4, 3, v1          ; r
    v_and_b32 v5, 7, v1              ; s
    v_lshrrev_b32 v6, 1, v4
    v_xor_b32 v5, v5, v6
    v_lshlrev_b32 v5, 4, v5
    v_lshl_add_u32 v{VX}, v4, 10, v5
    s_min_u32 s5, s37, 2
    s_mul_i32 s38, s37, 18
    s_add_u32 s38, s38, s5           ; rt0
    s_lshl_b32 s45, s38, 14
    s_mul_i32 s5, s43, {48*1024}
    s_add_u32 s45, s45, s5           ; x base
    s_mul_i32 s48, s43, 6144
    """)
    for i in range(1, 6):
        a(f"v_add_u32 v{VX+i}, {8192*i - 1024*(i & 3)}, v{VX}")
        if i & 1: a(f"v_xor_b32 v{VX+i}, 64, v{VX+i}")
    V(2)
    a(f"""
    v_lshrrev_b32 v4, 3, v2          ; wn
    v_lshlrev_b32 v4, 12, v4
    v_and_b32 v5, 1, v2              ; j
    v_lshl_add_u32 v4, v5, 10, v4
    v_bfe_u32 v6, v2, 1, 2           ; g'
    v_lshl_add_u32 v4, v6, 4, v4
    v_lshl_add_u32 v4, v3, 8, v4     ; + h*256
    s_lshr_b32 s5, s43, 1
    s_lshl_b32 s5, s5, 11
    s_and_b32 s6, s43, 1
    s_lshl_b32 s6, s6, 9
    s_add_u32 s5, s5, s6
    v_add_u32 v4, s5, v4
    v_lshl_add_u32 v22, v5, 6, v4
    v_xor_b32 v23, 64, v22
    v_lshlrev_b32 v25, 2, v2
    v_lshrrev_b32 v4, 4, v1          ; r
    s_lshl_b32 s5, s43, 2
    v_add_u32 v4, s5, v4             ; row
    v_and_b32 v5, 15, v1             ; c
    v_and_b32 v6, 7, v4
    v_xor_b32 v6, v6, v5
    v_lshlrev_b32 v6, 4, v6
    v_lshl_add_u32 v26, v4, 8, v6
    v_add_u32 v28, {OHI}, v26
    v_mul_u32_u24 v4, 9216, v4
    v_lshl_add_u32 v27, v5, 4, v4
    s_mul_i32 s50, s38, {16*9216}
    s_lshl_b32 s5, s36, 8
    s_add_u32 s50, s50, s5
    s_lshl_b32 s5, s43, 3
    s_lshr_b32 s5, s41, s5
    s_and_b32 s6, s5, 7
    s_lshl_b32 s6, s6, 7
    s_bfe_u32 s5, s5, 0x30004
    s_lshl_b32 s5, s5, 7
    s_add_u32 s7, s38, {R1}
    s_lshl_b32 s7, s7, 14
    s_add_u32 s52, s7, s6
    s_add_u32 s53, s7, s5            ; tt=1
    s_lshl_b32 s51, s43, 12
    """)
    if o["prot"]:
        a("s_cmp_ge_u32 s40, 6\ns_cselect_b32 s5, 6, 0\ns_sub_u32 s5, s40, s5\ns_lshl_b32 s56, s5, 14")
        for p in range(1, 6):
            a(f"s_add_u32 s{56+p}, s{55+p}, 16384\ns_cmp_eq_u32 s{56+p}, {6*16384}\ns_cselect_b32 s{56+p}, 0, s{56+p}")
    else:
        for p in range(6): a(f"s_mov_b32 s{56+p}, {16384*p}")
    V(o["lead"] + 3 - 10)
    barrier(True)
    pendbar = [None]
    wtok = {}
    def do_bar(t):
        vm.wait(xtok[t]); lg.wait(wtok[t])
        barrier(True); bar_done[0] = t
    credit = [-3.0]
    for t in range(8):
        a(f"s_bfe_u32 s5, s41, {0x20000 + 4*t + 1:#x}\ns_lshl_b32 s5, s5, 12\nv_add_u32 v24, s5, v25")
        rate = (14 if t < 7 else o["n7"]) / 10.0
        def VP():
            credit[0] += rate
            while credit[0] >= 0.999:
                if vl and vl[0][0] == "p" and bar_done[0] < PAV[vl[0][1]]: break
                if vl and vl[0][0] == "x" and vl[0][1] >= 3 and bar_done[0] < vl[0][1] - 2: break
                if vl and vl[0][0] == "q" and (vl[0][1] - 2, vl[0][2]) in unread: break
                V(); credit[0] -= 1
        qb = QB[t & 1]
        ltok = {}
        unread = set((t, e) for e in range(8)) | set((t + 1, e) for e in range(8))
        def ors(pr):
            lg.wait(ltok[2 * pr + 1])
            for i in range(4):
                a(f"v_or_b32 v{WV + 4*i + pr}, v{WV + 4*i + pr}, v{LT + 4*pr + i}")
        for e in range(8):
            VP()
            vm.wait(qtok[(t, e)])
            for i in range(4):
                a(f"v_lshl_add_u32 v{qb + 4*e + i}, v{qb + 4*e + i}, 8, v24")
            if e in (3, 5, 7): ors((e - 3) // 2)
            if lg.n - lg.done > 11: lg.wait(lg.n - 11)
            for i in range(4):
                off = TAB + (i >> 1) * 128 + (i & 1) * 2
                if e & 1: a(f"ds_read_u16_d16_hi v{LT + 4*(e >> 1) + i}, v{qb + 4*e + i} offset:{off}")
                else:     a(f"ds_read_u16 v{WV + 4*i + (e >> 1)}, v{qb + 4*e + i} offset:{off}")
                ltok[e] = lg.issue()
            unread.discard((t, e))
            if pendbar[0] is not None and e + 1 == o["defer"]:
                do_bar(pendbar[0]); pendbar[0] = None
        VP()
        ors(3)
        for i in range(4):
            a(f"ds_write_b128 v{22 + (i & 1)}, v[{WV + 4*i}:{WV + 4*i + 3}] offset:{WB + (t & 1) * 16384 + (i >> 1) * 128}")
            wtok[t] = lg.issue()
        VP()
        if o["defer"] and t < 7: pendbar[0] = t
        else: do_bar(t)
    OB = 64
    rtok = {}
    def oread(slot, idx):
        r = OB + 4 * (idx % 16)
        ad = oslot(slot)
        if ad >= OHI: a(f"ds_read_b128 v[{r}:{r+3}], v28 offset:{ad - OHI}")
        else: a(f"ds_read_b128 v[{r}:{r+3}], v26 offset:{ad}")
        rtok[idx] = lg.issue()
    sl = []
    def ostore():
        idx = sl.pop(0)
        r = OB + 4 * (idx % 16)
        if R1 <= idx < R1 + 6:
            a(f"s_mul_i32 s55, s{56 + idx - R1}, 9\ns_add_u32 s55, s55, s49")
        else:
            a(f"s_add_u32 s55, s50, {idx * 16 * 9216}")
        lg.wait(rtok[idx])
        a(f"buffer_store_dwordx4 v[{r}:{r+3}], v27, s[28:31], s55 offen {o['st']}")
        vm.issue()
    a(f"s_add_u32 s49, s50, {R1 * 16 * 9216}")
    pub = {8: [(s, s) for s in range(6)], 9: [(s, s) for s in range(6, 9)], 10: [(s, s) for s in range(9, 12)] + [(0, 12)],
           11: [(1, 13)], 12: [(2, 14)], 13: [(3, 15)], 14: [(4, 16)], 15: [(5, 17)]}
    sched = o["sched"].split(",")
    for b in range(7, 15):
        for (s, idx) in pub.get(b, []):
            oread(s, idx); sl.append(idx)
        for ch in sched[b - 7]:
            if ch == "L":
                if vl and bar_done[0] >= PAV[vl[0][1]]: V()
            elif sl: ostore()
        lg.drain()
        if b + 1 <= 14: vm.wait(ptok[b + 1 - 8]); assert not any(x[1] <= b + 1 - 8 for x in vl)
        barrier(b + 1 in (8, 9, 13)); bar_done[0] = b + 1
    assert not vl
    oread(5, 17); sl.append(17)
    while sl: ostore()
    a("s_cmp_ge_u32 s37, 2\ns_cbranch_scc1 L_pdone")
    a("s_barrier")
    oread(6, 18); sl.append(18); ostore()
    a.label("L_pdone")
    if stamps:
        stamp(); a("s_waitcnt vmcnt(0)"); stamp()
    write_stamps(16, "L_ps")
    a.label("L_end")
    a("s_endpgm")

    a.raw(".p2align 6")
    a.label("L_cons")
    nst[0] = 0
    lg = Q(a, "lgkmcnt", 15)
    if o["pc"]: a(f"s_setprio {o['pc']}")
    a(f"""
    v_and_b32 v10, 15, v1            ; m / pos
    v_lshrrev_b32 v11, 4, v1         ; g
    s_lshl_b32 s5, s42, 12
    v_lshl_add_u32 v6, v1, 2, s5
    v_lshrrev_b32 v12, 1, v10        ; (m>>1)&7
    v_xor_b32 v12, v12, v11
    v_lshlrev_b32 v12, 4, v12
    v_lshl_add_u32 v0, v10, 7, v12   ; m*128 + (g^swz)*16
    v_add_u32 v0, {ring(0)}, v0
    v_xor_b32 v1, 64, v0
    v_and_b32 v12, 3, v10            ; i'
    v_lshrrev_b32 v13, 2, v10        ; g'
    v_lshlrev_b32 v13, 4, v13
    v_lshl_add_u32 v13, v12, 6, v13
    v_lshl_add_u32 v13, v11, 8, v13
    v_add_u32 v2, s5, v13
    s_lshl_b32 s6, s42, 2
    v_add_u32 v12, s6, v11           ; chunk
    v_and_b32 v13, 7, v10
    v_xor_b32 v12, v12, v13
    v_lshlrev_b32 v12, 4, v12
    v_lshl_add_u32 v3, v10, 8, v12   ; obase
    s_waitcnt vmcnt({1 if o['prefetch'] else 0})
    v_lshlrev_b32 v9, 16, v8
    v_and_b32 v8, 0xffff0000, v8
    """)
    for q in range(16):
        r = 12 + (q % 8) * 2
        c = NF4B[q] << 16
        a(f"v_mul_f32 v{r}, {hex(c)}, v9\nv_mul_f32 v{r+1}, {hex(c)}, v8\nv_cvt_pk_bf16_f32 v{r}, v{r}, v{r+1}")
        if q & 1:
            a(f"ds_write2st64_b32 v6, v{r-2}, v{r} offset0:{q-1} offset1:{q}")
            lg.issue()
    lg.drain()
    barrier(True)
    a("s_waitcnt vmcnt(0)")

    ACC = 32
    def acc1(rt): return ACC + 8 * rt
    frs = []; groups = []
    for t in range(8):
        for rt in range(R1):
            ids = []
            for kk in range(2):
                ids.append(len(frs)); frs.append(dict(grp=t, t=t, kk=kk, off=rt*2048))
            groups.append(dict(grp=t, ids=ids, acc=acc1(rt), first=(t == 0), last=(t == 7), tile=rt))
    G2 = o["G2"]
    for p in range(7):
        for g0 in range(0, 16, G2):
            ids = []
            for k in range(g0, g0 + G2):
                ids.append(len(frs)); frs.append(dict(grp=8+p, t=k >> 1, kk=k & 1, off=(k >> 1)*2048))
            groups.append(dict(grp=8+p, ids=ids, acc=acc1(p % 2), first=(g0 == 0), last=(g0 + G2 == 16), tile=R1 + p))
    free = [4 * i for i in range(1, 8)]
    bufof = {}; tok = {}; wt = {}
    issued = [0]; open_grp = [-1]; base = [ring(0), ring(0)]
    def grp_base(g): return ring(g) if g < 8 else xtile(g - 8)
    maxahead = [99]
    def try_read():
        n = issued[0]
        if n >= len(frs): return False
        f = frs[n]
        if f["grp"] > open_grp[0] or not free or lg.n - lg.done >= 14: return False
        gb = grp_base(f["grp"]); kk = f["kk"]
        if gb != base[kk]:
            a(f"v_add_u32 v{kk}, {(gb - base[kk]) & 0xffffffff:#x}, v{kk}"); base[kk] = gb
        b = free.pop(0); bufof[n] = b
        a(f"ds_read_b128 v[{b}:{b+3}], v{kk} offset:{f['off']}")
        tok[n] = lg.issue(); issued[0] += 1
        return True
    wq = []
    def try_w():
        if not wq or lg.n - lg.done >= 14: return False
        g, kk, j = wq.pop(0)
        r = 16 * g + 8 * kk + 4 * j
        a(f"ds_read_b128 a[{r}:{r+3}], v2 offset:{WB + (g & 1) * 16384 + kk * 2048 + j * 1024}")
        wt[(g, kk, j)] = lg.issue()
        return True
    epi = []
    wr = {}
    OH = [None]
    def add_epi(gr):
        acc, tile = gr["acc"], gr["tile"]
        li = len(a.lines)
        s = tile if tile < R1 else tile - R1
        ming = 8 if 6 <= tile < R1 else 0
        for (d, x, y) in ((0, 0, 1), (1, 2, 3), (2, 5, 4), (3, 7, 6)):
            epi.append([li, 0, f"v_cvt_pk_bf16_f32 v{acc+d}, v{acc+x}, v{acc+y}", "c", tile])
        if tile == 0:
            epi.append([li, 0, f"v_add_u32 v2, {OHI}, v3", "c", tile])
        ad = oslot(s)
        epi.append([li, ming, f"ds_write_b128 v2, v[{acc}:{acc+3}] offset:{ad - OHI}" if ad >= OHI else f"ds_write_b128 v3, v[{acc}:{acc+3}] offset:{ad}", "w", tile])
    def try_epi(force=False):
        if not epi: return False
        li, ming, txt, kind, tile = epi[0]
        if open_grp[0] < ming: return False
        dist = len(a.lines) - li
        if dist < 8:
            if not force: return False
            a(f"s_nop {8 - dist - 1}")
        if kind == "w":
            if lg.n - lg.done >= 14:
                if not force: return False
                lg.wait(lg.n - 13)
            a(txt); wr[tile] = lg.issue()
        else: a(txt)
        epi.pop(0)
        return True
    def flush_epi(upto):
        while epi and epi[0][4] <= upto: assert try_epi(force=True)
    def open_group(g):
        barrier(g <= 9 or g == 13)
        open_grp[0] = g
        if g < 8:
            wq.extend([(g, 0, 0), (g, 1, 0), (g, 0, 1), (g, 1, 1)])
        if g == 8:
            free.extend([acc1(2) + 4 * i for i in range(8)])
    def finish(lab):
        flush_epi(99)
        lg.drain()
        barrier(True)
        write_stamps(0, lab)
        a("s_endpgm")
    PUB = {8: 5, 9: 8, 10: 12, 11: 13, 12: 14, 13: 15, 14: 16, 15: 17}
    open_group(0)
    try_w(); try_w(); try_read(); try_read(); try_w(); try_w()
    while try_read(): pass
    NG = len(groups)
    for gi, gr in enumerate(groups):
        g = gr["grp"]
        rem = sum(1 for x in groups[gi:] if x["grp"] == g)
        ahead = 1 if g < 8 else max(1, 8 // G2)
        if rem == ahead:
            if g + 1 >= 8:
                flush_epi(PUB[g + 1]); lg.wait(wr[PUB[g + 1]])
            if g < 8:
                assert frs[issued[0]]["grp"] == g + 1
                lg.drain()
            if g + 1 <= 14:
                open_group(g + 1)
                if g < 7: try_w(); try_w()
                if g < 8: try_read(); try_read()
            else:
                barrier()
        ms = [(j, n) for j in range(2) for n in gr["ids"]]
        for mi, (j, n) in enumerate(ms):
            f = frs[n]
            nfill = 0
            if j == 0 and mi % 2 == 0:
                n2 = gr["ids"][mi + 1]
                while n2 >= issued[0]:
                    if not try_read():
                        lg.wait(lg.done + 1); assert try_read()
                if lg.wait(tok[n2]): nfill += 1
            if g < 8:
                while (g, f["kk"], j) not in wt: assert try_w()
                if lg.wait(wt[(g, f["kk"], j)]): nfill += 1
            r = 16 * f["t"] + 8 * f["kk"] + 4 * j
            d = gr["acc"] + 4 * j; b = bufof[n]
            c = "0" if (gr["first"] and n == gr["ids"][0]) else f"v[{d}:{d+3}]"
            a(f"v_mfma_f32_16x16x32_bf16 v[{d}:{d+3}], a[{r}:{r+3}], v[{b}:{b+3}], {c}")
            if j == 1: free.append(b)
            if mi == len(ms) - 1 and gr["last"]:
                add_epi(gr)
                if g == 13:
                    a("s_cmp_ge_u32 s37, 2\ns_cbranch_scc0 L_c19")
                    sv = (lg.n, lg.done, [list(e) for e in epi], nst[0], dict(wr))
                    finish("L_cs1")
                    lg.n, lg.done, nst[0] = sv[0], sv[1], sv[3]
                    epi[:] = [[len(a.lines)] + e[1:] for e in sv[2]]
                    a.label("L_c19")
            nxt_wait = (mi == len(ms) - 1) or (ms[mi + 1][0] == 0 and (mi + 1) % 2 == 0)
            budget = 1 if nxt_wait else 2
            did = 0
            if try_w() or try_read(): did += 1
            if did < budget and try_epi(): did += 1
            if did < budget and did == 1 and len(epi) > 10 and try_epi(): did += 1
    finish("L_cs2")
    a.label("L_last")
    a.raw(".fill 256, 4, 0xbf800000")
    return wrap(a.text(), 256, 512, LDS_BYTES, vgpr=256, sgpr=102, accum=128)

if __name__ == "__main__":
    out = sys.argv[1]
    kw = {}
    for x in sys.argv[2:]:
        k, v = x.split("=", 1)
        kw[k] = type(DEF[k])(v)
    open(out, "w").write(gen(**kw))
```

```python
import sys, copy
from asmlib import *

NF4B = [0xbf80,0xbf32,0xbf06,0xbeca,0xbe92,0xbe3d,0xbdba,0x0,0x3da3,0x3e25,0x3e7c,0x3ead,0x3ee2,0x3f10,0x3f39,0x3f80]
TAB, WB, XA = 0, 16384, 49152
LDS_BYTES = 163840

def fill(pre): return list(pre) + [x for x in range(8) if x not in pre]
TABS = {
 "d3": [fill(p) for p in ([1],[2],[3],[0,4],[0,1,5],[0,1,2,6],[0,1,2,3,7])],
 "f2": [fill(p) for p in ([1],[2],[0,3],[1,4],[2,0,5],[0,1,6],[1,0,2,7])],
 "g1": [fill(p) for p in ([1],[2],[0,3],[0,4],[0,5],[1,6],[2,7])],
 "g2": [fill(p) for p in ([0],[1],[2],[3,4],[0,5],[1,6],[2,7])],
 "g3": [fill(p) for p in ([0],[1],[0,2],[1,3],[0,4,1,7],[1,0,5],[0,1,6])],
 "g4": [fill(p) for p in ([0],[1],[2],[3],[4,5],[0,6],[1,7])],
 "g5": [fill(p) for p in ([0],[0],[1,0,2,5],[2,0,1,3,6],[0,3],[0,1,4],[1,0,2,3,4,7])],
}
class Q:
    def __init__(self, a, name, mx):
        self.a, self.name, self.mx = a, name, mx
        self.n = 0; self.done = 0
    def issue(self):
        self.n += 1
        return self.n
    def wait(self, tok):
        if tok <= self.done: return False
        y = self.n - tok
        if y > self.mx - 1:
            y = self.mx - 1; tok = self.n - y
        self.a(f"s_waitcnt {self.name}({y})")
        self.done = tok
        return True
    def drain(self): self.wait(self.n)

DEF = dict(order="d2", xrot=7, stamps=0, prefetch=1, st="nt", R1=8, c22=0, chain=0, G2=4, prot=1,
           lead=11, defer=4, defer0=0, estep=1, cu=12, cw=60, cv=6, ppoff=8, pre=0, pre0=5, n7=10, mix=0, hold0=2,
           LAmin=9, LAmax=14, burst=4, bah=8, hb=16, w7=6, wmax=3, open8=1,
           smax=3, l7=6, lp=4, thr=0, sw=0, stb=0, xpf=0, cx=0, cx0=4, cxs=6, x1at=5, x0e=2, rf=-1, pe=8, st2='', st2from=99, sg=4, sg1=6, lag=2, swap=0, prio2=0, tlb=0, skipd=1, x0r=0, pf1=2, half=0, e7=0)

def gen(**kw):
    o = dict(DEF); o.update(kw)
    stamps = o["stamps"]; c22 = o["c22"]
    R1 = o["R1"]; NP = 19 - R1; SLOT = 2048 * R1; NX = R1 // 2; H = R1 // 2
    RING0 = LDS_BYTES - 3 * SLOT
    def ring(t): return RING0 + SLOT * ((t + 1) % 3)
    nst = [0]
    def mk_tools(a):
        def stamp():
            if stamps:
                r = 68 + 2 * nst[0]; nst[0] += 1
                assert r <= 94
                a(f"s_memtime s[{r}:{r+1}]")
        def barrier(st=False):
            if st and stamps == 2: stamp()
            a("s_barrier")
            if st and stamps == 1: stamp()
        def write_stamps(slot0, lab):
            if not stamps: return
            a("s_memrealtime s[62:63]\ns_waitcnt lgkmcnt(0)")
            a(f"s_and_b32 s3, s42, 3\ns_cmp_lg_u32 s3, {o['sw']}\ns_cbranch_scc1 {lab}")
            a("s_mov_b64 exec, 1\ns_lshl_b32 s3, s2, 8\nv_mov_b32 v1, s3")
            if slot0 == 0:
                a("v_mov_b32 v2, s64\nv_mov_b32 v3, s65\nbuffer_store_dwordx2 v[2:3], v1, s[32:35], 0 offen\ns_nop 1")
            a(f"v_mov_b32 v2, s62\nv_mov_b32 v3, s63\nbuffer_store_dwordx2 v[2:3], v1, s[32:35], 0 offen offset:{8 if slot0 == 0 else 16*8}\ns_nop 1")
            for i in range(14):
                r = 68 + 2 * min(i, nst[0] - 1)
                a(f"s_sub_u32 s4, s{r}, s66\ns_subb_u32 s5, s{r+1}, s67\ns_add_u32 s4, s4, s64\ns_addc_u32 s5, s5, s65")
                a(f"v_mov_b32 v2, s4\nv_mov_b32 v3, s5\nbuffer_store_dwordx2 v[2:3], v1, s[32:35], 0 offen offset:{(slot0 + 2 + i - (1 if slot0 else 0))*8}\ns_nop 1")
            a.label(lab)
        return stamp, barrier, write_stamps
    def korder(a):
        if o["order"] == "d2":
            a("""
            s_lshl_b32 s5, s37, 2
            s_sub_u32 s5, s5, 4
            s_lshl_b32 s5, 270, s5
            s_cmp_eq_u32 s37, 0
            s_cselect_b32 s5, 15, s5
            s_sub_u32 s41, 0x76543210, s5
            """)
        elif o["order"] == "d1":
            a("s_lshl_b32 s5, s37, 2\ns_lshl_b32 s5, 15, s5\ns_sub_u32 s41, 0x76543210, s5")
        elif o["order"] == "rot":
            a("s_mul_i32 s5, s37, 0x11111111\ns_add_u32 s41, s5, 0x76543210\ns_and_b32 s41, s41, 0x77777777")
        elif o["order"] in TABS:
            pk = [sum(st << (4*t) for t, st in enumerate(x)) for x in TABS[o["order"]]]
            a(f"s_mov_b32 s41, {pk[0]:#x}")
            for c in range(1, 7): a(f"s_cmp_eq_u32 s37, {c}\ns_cselect_b32 s41, {pk[c]:#x}, s41")
        else:
            a("s_mov_b32 s41, 0x76543210")
        if o["xrot"]:
            a(f"s_and_b32 s5, s2, {o['xrot']}\ns_mul_i32 s5, s5, 0x11111111\ns_add_u32 s41, s41, s5")
    SX = [47, 61, 96, 97, 98, 99, 100, 101]
    cx = o["cx"]
    units = []
    for u in range(7):
        hi = XA + 16384 * (u + 1)
        units.append((-2 if hi <= RING0 else 6 + (hi - 1 - RING0) // SLOT, XA + 16384 * u))
    units += [(7, TAB), (7, WB), (8, WB + 16384)]
    units.sort(key=lambda x: x[0])
    def xtile(p): return units[p % 10][1]
    def PAV(p): return units[p][0] if p < 10 else p - 10 + 10
    n_early = 4 * o["pre"] + o["pe"]
    plan = {}; k = n_early
    for b in range(7, 30):
        n = o["l7"] if b == 7 else o["lp"]
        c = 0
        while c < n and k < 4 * NP and PAV(k // 4) <= b: k += 1; c += 1
        plan[b] = c
    def issue_period(p):
        k = n_early
        if 4 * p + 4 <= k: return 6
        for b in range(7, 30):
            k += plan[b]
            if 4 * p + 4 <= k: return b
    def opener(p):
        b = min(8 + p, max(8, issue_period(p) + o["lag"]))
        assert issue_period(p) < b, (p, issue_period(p))
        return b
    LB = opener(NP - 1)
    STB = lambda b: b in ((0, 1, 3, 5, 6, 7, 8, 9, 10, 11, 13) if not o["stb"] else (0, 1, 2, 3, 4, 5, 6, 7, 8, 10, 13))

    a = ca = Asm()
    stamp, barrier, write_stamps = mk_tools(a)
    a.raw(".p2align 6")
    a.label("L_cons")
    lg = Q(a, "lgkmcnt", 15)
    a("s_lshl_b32 s6, s42, 12\nv_lshl_add_u32 v30, v1, 2, s6    ; table write addr")
    VO = 4 + (4 * ((NX + 3) // 4) if cx else 0)
    swap = o['swap'] and c22
    SO = [10, 11, 14, 20, 21, 22, 24, 25, 26, 39, 43, 44, 46]
    def rest_setup():
        a(f"""
        v_and_b32 v40, 15, v1            ; m / pos
        v_lshrrev_b32 v41, 4, v1         ; g
        v_lshrrev_b32 v42, 1, v40        ; (m>>1)&7
        v_and_b32 v43, 1, v40
        v_lshl_add_u32 v43, v43, 3, v42  ; sigma
        v_xor_b32 v42, v42, v41
        v_lshlrev_b32 v42, 4, v42
        v_lshl_add_u32 v0, v40, 7, v42   ; m*128 + (g^swz)*16
        s_and_b32 s7, s42, {1 if c22 else 0}
        s_mul_i32 s8, s7, {H * 2048}
        s_add_u32 s5, s8, {RING0}
        v_add_u32 v0, s5, v0
        v_xor_b32 v1, 64, v0
        v_lshlrev_b32 v43, 4, v43
        v_lshl_add_u32 v43, v41, 8, v43
        v_add_u32 v2, s6, v43
        v_xor_b32 v3, 4096, v2
        s_mov_b32 s31, s23
        s_mov_b32 s30, 18874368
        v_mul_u32_u24 v41, {4 * 9216}, v41
        v_lshl_add_u32 v{VO}, v40, 2, v41
        v_add_u32 v{VO+1}, 9216, v{VO}
        v_add_u32 v{VO+2}, {2*9216}, v{VO}
        v_add_u32 v{VO+3}, {3*9216}, v{VO}
        s_min_u32 s5, s37, 2
        s_mul_i32 s38, s37, 18
        s_add_u32 s38, s38, s5           ; rt0
        s_mul_i32 s50, s38, {16*9216}
        s_lshl_b32 s5, s36, 8
        s_add_u32 s50, s50, s5
        s_lshl_b32 s5, s42, 6
        s_add_u32 s50, s50, s5
        s_add_u32 s49, s50, {R1 * 16 * 9216}
        s_mul_i32 s7, s7, {H * 16 * 9216}
        s_add_u32 s15, s50, s7
        s_xor_b32 s13, s15, 64
        """)
        if swap:
            a(f"""
            s_andn2_b32 s15, s15, 64
            s_add_u32 s13, s15, {4 * 9216}
            v_lshrrev_b32 v42, 8, v2
            v_xor_b32 v43, s42, v42
            v_and_b32 v43, 1, v43
            v_lshlrev_b32 v43, 6, v43
            v_lshl_add_u32 v43, v40, 2, v43
            v_bfe_u32 v42, v42, 1, 1
            v_mul_u32_u24 v42, {8 * 9216}, v42
            v_add_u32 v{VO+4}, v42, v43
            v_add_u32 v{VO+5}, 9216, v{VO+4}
            v_add_u32 v{VO+6}, {2*9216}, v{VO+4}
            v_add_u32 v{VO+7}, {3*9216}, v{VO+4}
            """)
        a(f"""
        s_cmp_lt_u32 s37, 2
        s_cselect_b32 s59, {NP}, {NP - 1}
        s_mul_i32 s59, s59, 147456
        """)
        if o["prot"]:
            a(f"s_and_b32 s5, s40, 3\ns_mul_i32 s5, s5, {NP}\ns_lshr_b32 s5, s5, 2\ns_mul_i32 s57, s5, 147456")
        else:
            a("s_mov_b32 s57, 0")
        for p in range(NP):
            if p: a("s_add_u32 s57, s57, 147456\ns_cmp_eq_u32 s57, s59\ns_cselect_b32 s57, 0, s57")
            a(f"s_add_u32 s{SO[p]}, s57, s49")
        if o["tlb"]:
            a(f"s_mul_i32 s5, s42, {95 * 9216}\ns_add_u32 s5, s5, s50\ns_mov_b64 exec, 1")
            a(f"buffer_load_dword a95, v{VO}, s[28:31], s5 offen\ns_mov_b64 exec, -1")
            vmc.issue()
    vmc = Q(a, "vmcnt", 63); xtk = {}; xfull = {}
    VC = 4
    if cx:
        korder(a)
        a(f"""
        s_mov_b32 s19, s23
        s_mov_b32 s18, 2097152
        v_lshrrev_b32 v12, 3, v1         ; r
        v_and_b32 v13, 7, v1             ; s
        v_lshrrev_b32 v15, 1, v12
        v_xor_b32 v13, v13, v15
        v_lshlrev_b32 v13, 4, v13
        v_lshl_add_u32 v{VC}, v12, 10, v13
        s_min_u32 s5, s37, 2
        s_mul_i32 s38, s37, 18
        s_add_u32 s38, s38, s5           ; rt0
        s_lshl_b32 s45, s38, 14
        s_mul_i32 s9, s42, {NX * 1024}
        s_lshl_b32 s5, s9, 3
        s_add_u32 s45, s45, s5           ; x base
        """)
        if NX & 1: a(f"s_and_b32 s5, s42, 1\ns_lshl_b32 s5, s5, 6\nv_xor_b32 v{VC}, s5, v{VC}")
        for i in range(1, NX):
            a(f"v_add_u32 v{VC+i}, {8192*i - 1024*(i & 3)}, v{VC}")
            if i & 1: a(f"v_xor_b32 v{VC+i}, 64, v{VC+i}")
        sxs = lambda t: a(f"s_bfe_u32 s5, s41, {0x30000 + 4*t:#x}\ns_lshl_b32 s5, s5, 7\ns_add_u32 s{SX[t]}, s45, s5")
        sxs(0)
        a(f"s_add_u32 m0, s9, {ring(0)}")
    xq = [(t, i) for t in range(8) for i in range(NX)] if cx else []
    def cxload():
        t, i = xq.pop(0)
        if a.lines[-1].strip().startswith("s_add_u32 m0"): a("s_nop 0")
        a(f"buffer_load_dwordx4 v{VC+i}, s[16:19], s{SX[t]} offen offset:{1024*(i & 3)} lds")
        xtk[t] = vmc.issue()
        if i == NX - 1: xfull[t] = xtk[t]
        if xq and (xq[0][1] & 3) == 0: a(f"s_add_u32 m0, s9, {ring(xq[0][0]) + 1024 * xq[0][1]}")
    if not cx: o["x0e"] = 0
    for _ in range(o["x0e"]): cxload()
    a(f"""
    s_waitcnt vmcnt({o["x0e"]})
    v_lshlrev_b32 v29, 16, v28
    v_and_b32 v28, 0xffff0000, v28
    """)
    for q in range(16):
        r = 12 + (q % 8) * 2
        c = NF4B[q] << 16
        a(f"v_mul_f32 v{r}, {hex(c)}, v29\nv_mul_f32 v{r+1}, {hex(c)}, v28\nv_cvt_pk_bf16_f32 v{r}, v{r}, v{r+1}")
        if q & 1:
            a(f"ds_write2st64_b32 v30, v{r-2}, v{r} offset0:{q-1} offset1:{q}")
            lg.issue()
    lg.drain()
    barrier(True)
    if cx:
        for _ in range(NX - o["x0e"]): cxload()
        for t in range(1, 8): sxs(t)
    rest_setup()
    if cx:
        for _ in range(o["x1at"]): cxload()
        vmc.wait(NX)
    ACC = 128 - 8 * R1
    M = []; L = {}
    for t in range(8):
        for kk in range(2):
            for j in range(2):
                off = WB + (t & 1) * 16384 + kk * 2048 + j * 1024
                L[("w", t, kk, j, 0)] = dict(grp=t, base=2, off=off, fixed=f"a{16*t + 8*kk + 4*j}")
                if c22:
                    fx = None
                    if t in (0, 2, 4): fx = f"a{96 + 8*kk + 4*j}"
                    if t in (1, 3, 6): fx = f"a{112 + 8*kk + 4*j}"
                    L[("w", t, kk, j, 1)] = dict(grp=t, base=3, off=off, fixed=fx)
        ng = H if c22 else R1
        for i in range(ng):
            for kk in range(2):
                L[("x", t, i, kk)] = dict(grp=t, base=kk, ad=ring(t) + i * 2048, g0=ring(t), fixed=None)
            if c22:
                sp = (t == 6 and i == ng - 1) or (t == 7 and i == 0)
                pars = [1, 0] if sp else [0, 1]
                if o["chain"] or sp: seq = [(par, j, kk) for par in pars for j in range(2) for kk in range(2)]
                else: seq = [(par, j, kk) for kk in range(2) for par in pars for j in range(2)]
            else:
                seq = [(0, j, kk) for j in range(2) for kk in range(2)]
            for n, (par, j, kk) in enumerate(seq):
                u = 2 * i + par if c22 else i
                m = dict(W=("w", t, kk, j, par), X=("x", t, i, kk), acc=(u, j), first=(t == 0 and kk == 0), end=None)
                if t == 7 and not any(p2 == par for (p2, _, _) in seq[n + 1:]): m["end"] = u
                M.append(m)
    N1 = len(M)
    G2 = o["G2"]
    for p in range(NP):
        for g0 in range(0, 16, G2):
            for k in range(g0, g0 + G2):
                L[("x", 8 + p, k)] = dict(grp=opener(p), base=k & 1, ad=xtile(p) + (k >> 1) * 2048, g0=xtile(p), fixed=None, ph2=True)
            for j in range(2):
                for k in range(g0, g0 + G2):
                    M.append(dict(W=("w", k >> 1, k & 1, j, 0), X=("x", 8 + p, k), acc=(R1 + p, j), first=(k == 0),
                                  end=(R1 + p if (j == 1 and k == 15) else None)))
    first_use = {}; last_use = {}
    for n, m in enumerate(M):
        for k in (m["W"], m["X"]):
            first_use.setdefault(k, n); last_use[k] = n
    lq = sorted(L.keys(), key=lambda k: (first_use[k], k[0] != "w"))
    occ = {}
    for k in lq:
        fx = L[k]["fixed"]
        if fx:
            L[k]["avail"] = last_use[occ[fx]] if fx in occ else -1
            occ[fx] = k
    free = [f"v{4*i}" for i in range(VO // 4 + (2 if swap else 1), ACC // 4)]
    reg = {}; tok = {}; iss_at = {}
    accreg = {(u, j): ACC + 8 * u + 4 * j for u in range(R1) for j in range(2)}
    barn = [-1]; cur = [-1]; lastb = [0]
    base = [RING0, RING0]; inph2 = [False, False]
    def rq(r): return f"{r[0]}[{int(r[1:])}:{int(r[1:])+3}]"
    opt = {}
    def lds_issue():
        tk = lg.issue(); opt[tk] = cur[0]
        return tk
    def try_load(la=None, keep=0):
        for qi, k in enumerate(lq[:6]):
            l = L[k]
            if l["grp"] > barn[0]: return False
            if la is not None and first_use[k] - cur[0] > la: return False
            if l["fixed"]:
                if l["avail"] > cur[0]: continue
                r = l["fixed"]
            else:
                if len(free) <= keep: continue
                if k[0] == "x" and any(k2[0] == "x" for k2 in lq[:qi]): continue
                r = free.pop(0)
            b = l["base"]
            if k[0] == "x":
                if l.get("ph2") and not inph2[b]:
                    if b == 0: a(f"s_sub_u32 s12, {(l['g0'] - base[b]) & 0xffffffff:#x}, s8")
                    a(f"v_add_u32 v{b}, s12, v{b}"); base[b] = l["g0"]; inph2[b] = True
                elif not (0 <= l["ad"] - base[b] <= 65535):
                    nb = l["g0"] if l.get("ph2") else (RING0 if l["ad"] < base[b] else RING0 + 16384)
                    a(f"v_add_u32 v{b}, {(nb - base[b]) & 0xffffffff:#x}, v{b}"); base[b] = nb
                off = l["ad"] - base[b]
            else: off = l["off"]
            a(f"ds_read_b128 {rq(r)}, v{b} offset:{off}")
            reg[k] = r; tok[k] = lds_issue(); iss_at[k] = cur[0]
            lq.pop(qi)
            return True
        return False
    epi_c = []; epi_w = []; wr = {}; cdone = set(); relq = []; pubat = {}; pub = {}
    ended = set()
    def add_epi(u):
        lo, hi = accreg[(u, 0)], accreg[(u, 1)]
        li = len(a.lines)
        pair = c22 and u < R1
        for i in range(4):
            epi_c.append([li, f"v_cvt_pk_bf16_f32 v{lo+i}, v{lo+i}, v{hi+i}", f"v{hi}" if i == 3 else None, [(u, i)] if not (pair and swap) else []])
        ended.add(u)
        if not pair:
            pos = len(epi_w)
            if o["prio2"] and u >= R1:
                pos = 0
                while pos < len(epi_w) and (skey(epi_w[pos][0]) == so[0] or epi_w[pos][0] >= R1): pos += 1
            epi_w[pos:pos] = [(u, i) for i in range(4)]
        elif (u ^ 1) in ended:
            e = u & ~1
            if swap:
                for i in range(4):
                    epi_c.append([li, f"v_permlane16_swap_b32 v{accreg[(e, 0)]+i}, v{accreg[(e+1, 0)]+i}", None, [(e, i), (e + 1, i)]])
            epi_w.extend((e + k, i) for i in range(4) for k in range(2))
    so = [None]; lasts = [-99]
    skey = lambda u: (u & ~1) if (c22 and u < R1) else u
    def set_so():
        if not epi_w or so[0] == skey(epi_w[0][0]): return False
        u = so[0] = skey(epi_w[0][0])
        if u >= R1: return False
        elif c22: a(f"s_add_u32 s55, s15, {(u >> 1) * 147456}\ns_add_u32 s54, s13, {(u >> 1) * 147456}")
        else: a(f"s_add_u32 s55, s50, {u * 147456}")
        return True
    def w_ok(): return epi_w and epi_w[0] in cdone
    def do_w():
        set_so()
        u, i = epi_w.pop(0); lo = accreg[(u, 0)]
        pair = c22 and u < R1
        vo = VO + (4 if (pair and swap) else 0) + i
        a(f"buffer_store_dword v{lo+i}, v{vo}, s[28:31], {f's{SO[u - R1]}' if u >= R1 else ('s54' if (pair and u & 1) else 's55')} offen {(o['st'] if u < o['st2from'] else o['st2']).replace('_', ' ')}")
        lasts[0] = cur[0]
        if pair and not swap: lasts[0] += (o["sg"] - 1) if (u & 1) else -(o["sg"] - 1)
        if i == 3: relq.append((cur[0] + 2, f"v{lo}"))
    def try_c(force=False):
        if not epi_c: return False
        li, txt, rel, key = epi_c[0]
        dist = len(a.lines) - li
        if dist < 8:
            if not force: return False
            a(f"s_nop {8 - dist - 1}")
        if txt.startswith("v_permlane"):
            regs = txt.split()[1:]
            back = [l for l in a.lines[-2:] if l.strip().startswith("v_cvt") and l.split()[1].rstrip(",") in (regs[0].rstrip(","), regs[1])]
            if back:
                if not force: return False
                a("s_nop 1")
        a(txt); epi_c.pop(0); cdone.update(key)
        if rel: free.append(rel)
        return True
    def finish(lab):
        set_so()
        while epi_w:
            while epi_w[0] not in cdone or (len(epi_w) > 1 and epi_w[1] not in cdone): assert try_c(True)
            do_w()
        if stamps:
            stamp(); a("s_waitcnt vmcnt(0)")
        write_stamps(0, lab)
        a("s_endpgm")
    bpos = {}
    for g in range(8): bpos[4 * R1 * (g + 1) - o["bah"]] = g + 1
    for p in range(LB - 8): bpos[N1 + 32 * p + o["hb"]] = 9 + p
    barrier(True); barn[0] = 0
    for _ in range(10): try_load()
    for n, m in enumerate(M):
        if n in bpos:
            g = bpos[n]
            if g <= 8:
                mine = [k for k in L if L[k]["grp"] == g - 1 and not L[k].get("ph2")]
                while any(k not in tok for k in mine): assert try_load(), (g, lq[:3], free)
                lg.wait(max(tok[k] for k in mine))
                if o["tlb"] and not cx and g == 3: vmc.drain()
                if cx and g < 8:
                    while xq and xq[0][0] <= g: cxload()
                    vmc.wait(xfull[g])
                if cx and g == 7: free.extend(f"v{4*i}" for i in range(1, 1 + (NX + 3) // 4))
            barrier(STB(g))
            barn[0] = g; lastb[0] = n
            if g == 8:
                a.label("L_c2")
                for e in epi_c: e[0] += 1
            if g <= 8:
                for _ in range(o["burst"]): try_load(o["LAmax"])
        for k in (m["W"], m["X"]):
            while k not in tok: assert try_load(), (n, k, free)
        need = max(tok[m["W"]], tok[m["X"]])
        if need > lg.done:
            for m2 in M[n + 1:n + 4]:
                for k in (m2["W"], m2["X"]):
                    if k in tok and n - iss_at[k] >= 7: need = max(need, tok[k])
            lg.wait(need)
        while relq and relq[0][0] <= n: free.append(relq.pop(0)[1])
        if m["acc"] not in accreg: accreg[m["acc"]] = int(free.pop(0)[1:])
        d = accreg[m["acc"]]
        c = "0" if m["first"] else f"v[{d}:{d+3}]"
        a(f"v_mfma_f32_16x16x32_bf16 v[{d}:{d+3}], {rq(reg[m['X']])}, {rq(reg[m['W']])}, {c}")
        cur[0] = n
        for k in (m["W"], m["X"]):
            if last_use[k] == n and not L[k]["fixed"]: free.append(reg[k])
        if m["end"] is not None:
            add_epi(m["end"])
            if m["end"] == R1 + NP - 2:
                a("s_cmp_ge_u32 s37, 2\ns_cbranch_scc0 L_c19")
                sv = copy.deepcopy((epi_c, epi_w, nst[0], free, cdone, relq, so, lasts))
                finish("L_cs1")
                epi_c[:] = [[len(a.lines) + 1] + e[1:] for e in sv[0]]; epi_w[:] = sv[1]; nst[0] = sv[2]
                free[:] = sv[3]; cdone.clear(); cdone.update(sv[4]); relq[:] = sv[5]; so[:] = sv[6]; lasts[:] = sv[7]
                a.label("L_c19")
        keep = 2 if n >= N1 - 12 else 0
        margin = first_use[lq[0]] - n if (lq and L[lq[0]]["grp"] <= barn[0]) else 99
        wantw = w_ok() and (epi_w[0][0] >= R1 or so[0] == skey(epi_w[0][0])) and n - lasts[0] >= (o["sg"] if len(epi_w) > 4 else o["sg1"])
        did = False
        if margin <= o["LAmin"] or n % 2 == 0 or (n < N1 and not wantw): did = try_load(o["LAmax"], keep)
        if not did and wantw: do_w(); continue
        if xq and xq[0][0] <= barn[0] + 2:
            rel = n - (lastb[0] + o["cx0"])
            step = o["cxs"] if xq[0][0] == barn[0] + 2 and barn[0] > 0 else max(2, o["cxs"] // 2)
            if rel >= 0 and rel % step == 0: cxload()
        if not (not did and set_so()): try_c()
    backlog = len(epi_w)
    finish("L_cs2")
    a.label("L_last")
    a.raw(".fill 256, 4, 0xbf800000")

    a = Asm()
    nst[0] = 0
    stamp, barrier, write_stamps = mk_tools(a)
    a("s_load_dwordx2 s[24:25], s[0:1], 16")
    a("s_load_dwordx2 s[20:21], s[0:1], 8")
    a("s_load_dwordx2 s[16:17], s[0:1], 0")
    a("s_load_dwordx2 s[28:29], s[0:1], 24")
    if stamps:
        a("s_load_dwordx2 s[32:33], s[0:1], 40\ns_memrealtime s[64:65]\ns_memtime s[66:67]")
        a("s_mov_b32 s34, 0x100000\ns_mov_b32 s35, 0x00020000")
    a("""
    v_readfirstlane_b32 s42, v0
    s_and_b32 s3, s2, 1
    s_lshl_b32 s3, s3, 5
    s_lshr_b32 s4, s2, 3            ; idx
    s_add_u32 s3, s3, s4            ; u
    s_cmp_ge_u32 s4, 32
    s_cselect_b32 s3, 63, s3
    s_cmp_ge_u32 s3, 63
    s_cbranch_scc1 L_end
    s_mul_i32 s40, s3, 37
    s_lshr_b32 s40, s40, 8          ; sl = u/7
    s_mul_i32 s6, s40, 7
    s_sub_u32 s37, s3, s6           ; ms
    s_bfe_u32 s6, s2, 0x20001       ; p
    s_mul_i32 s6, s6, 9
    s_add_u32 s36, s6, s40          ; strip
    s_lshr_b32 s42, s42, 6
    v_and_b32 v2, 31, v0            ; c4
    v_bfe_u32 v3, v0, 5, 1          ; h
    s_mov_b32 s23, 0x00020000
    s_cmp_ge_u32 s42, 4
    s_cbranch_scc1 L_prod
    v_and_b32 v1, 63, v0
    """)
    if o["prefetch"]:
        if o["pf1"]: a(f"s_cmp_ge_u32 s42, {o['pf1']}\ns_cbranch_scc1 L_nopf")
        a("s_getpc_b64 s[6:7]")
        a.label("L_pc")
        if o["pf1"] == 1: a("s_lshl_b32 s8, s4, 10")
        elif o["pf1"] == 2: a("s_and_b32 s8, s4, 15\ns_lshl_b32 s8, s8, 11")
        else: a("s_and_b32 s8, s4, 7\ns_lshl_b32 s8, s8, 12")
        a(f"v_lshl_add_u32 v4, v0, 4, s8\nv_min_u32 v4, (L_last-L_pc)&0xfffffff0, v4")
        a(f"s_and_b32 s6, s6, 0xffffff80\nv_mov_b32 v5, 0\nv_lshl_add_u64 v[4:5], v[4:5], 0, s[6:7]")
        a("global_load_dwordx4 v[124:127], v[4:5], off")
        a.label("L_nopf")
    a("""
    s_mov_b32 s27, s23
    s_mov_b32 s26, 36864
    v_lshlrev_b32 v2, 3, v2
    v_lshl_add_u32 v2, v3, 2, v2     ; c4*8 + ih*4
    s_mul_i32 s5, s42, 9216
    s_lshl_b32 s6, s36, 8
    s_add_u32 s5, s5, s6
    s_waitcnt lgkmcnt(0)
    buffer_load_dword v28, v2, s[24:27], s5 offen
    s_branch L_cons
    """)

    a.label("L_prod")
    lg = Q(a, "lgkmcnt", 15); vm = Q(a, "vmcnt", 63)
    QB = [64, 96]; WV = 32; LT = 48; VQ = 8; VX = 16
    a("s_setprio 1\ns_sub_u32 s43, s42, 4\ns_mov_b32 s22, 9437184")
    korder(a)
    a(f"""
    v_mul_u32_u24 v4, 147456, v3
    v_lshl_add_u32 v{VQ}, v2, 4, v4
    s_lshl_b32 s44, s36, 9
    s_mul_i32 s5, s43, {16*18432}
    s_add_u32 s44, s44, s5           ; q base
    s_movk_i32 s7, 18432
    """)
    qtok = {}; xtok = {}; ptok = {}
    SQ = [46, 12, 13, 14, 15, 39, 48, 60]
    m0p = [None]
    def need_m0(val):
        if m0p[0] != val:
            a(f"s_add_u32 m0, {val[0]}, {val[1]}"); m0p[0] = val
    def m0_of(k, i, j):
        if k == "x": return ("s9", ring(i) + (4096 if j >= 4 else 0))
        if k == "p": return ("s51", xtile(i) + 2048 * (j >> 1))
    def dma(txt):
        if a.lines[-1].strip().startswith("s_add_u32 m0"): a("s_nop 0")
        a(txt)
        nx = next((v for v in vl if v[0] in "xp"), None)
        if nx and setup_done[0]: need_m0(m0_of(*nx))
    setup_done = [False]
    def qload(t, e):
        if e == 0 and t == 0:
            a(f"s_and_b32 s5, s41, 7\ns_mul_i32 s5, s5, {64*18432}\ns_add_u32 s{SQ[0]}, s44, s5")
            a("s_waitcnt lgkmcnt(0)")
        if t == 0 and e > 0: a(f"v_add_u32 v{VQ+e}, s7, v{VQ+e-1}")
        d = QB[t & 1] + 4 * e
        a(f"buffer_load_dwordx4 v[{d}:{d+3}], v{VQ+e}, s[20:23], s{SQ[t]} offen")
        qtok[(t, e)] = vm.issue()
    bar_done = [-2]
    def xload(t, i):
        assert t < 3 or bar_done[0] >= t - 2, (t, bar_done)
        if t == 0 and o["x0r"]:
            a(f"s_add_u32 s5, s40, {i}\ns_and_b32 s5, s5, 3\ns_lshl_b32 s5, s5, 10\ns_add_u32 s6, s5, {ring(0)}\ns_add_u32 m0, s6, s9")
            a(f"s_lshl_b32 s5, s5, 3\ns_add_u32 s3, s5, s{SX[0]}")
            m0p[0] = None
            a(f"buffer_load_dwordx4 v{30 + (i & 1)}, s[16:19], s3 offen lds")
            xtok[t] = vm.issue()
            return
        need_m0(m0_of("x", t, i))
        dma(f"buffer_load_dwordx4 v{VX+i}, s[16:19], s{SX[t]} offen offset:{1024*(i & 3)} lds")
        xtok[t] = vm.issue()
    dtok = []
    def pload(p, i):
        assert bar_done[0] >= PAV(p), (p, bar_done)
        tt, hh = i >> 1, i & 1
        need_m0(m0_of("p", p, i))
        if i == 0 and p > 0:
            a("s_add_u32 s56, s56, 16384\ns_cmp_eq_u32 s56, s58\ns_cselect_b32 s56, 0, s56")
        if hh == 0: a(f"s_add_u32 s54, s{52+tt}, s56")
        if bar_done[0] >= 7 and o["thr"] and len(dtok) >= o["thr"]: vm.wait(dtok[-o["thr"]])
        dma(f"buffer_load_dwordx4 v{VP2+hh}, s[16:19], s54 offen offset:{1024*hh} lds")
        ptok[p] = vm.issue(); dtok.append(ptok[p])
    vl = []; nvs = []
    pl = [("p", p, i) for p in range(NP) for i in range(4)]
    npre = 4 * o["pre"]
    for t in range(8):
        qs = [("q", t, e) for e in range(8)]; xs = [("x", t, i) for i in range(0 if cx else NX)]
        if o["pre0"] <= t < 7:
            k = -(-npre // (7 - t)); k += k & 1; k = min(k, npre); npre -= k
            xs += pl[:k]; pl = pl[k:]
        if o["mix"] and t > 0:
            mixed = []
            while qs or xs:
                if qs: mixed.append(qs.pop(0))
                if xs and len(xs) >= len(qs): mixed.append(xs.pop(0))
            cu_ = mixed
        else: cu_ = qs + xs
        vl += cu_; nvs.append(len(cu_))
    vl += pl
    def fload(i, j):
        a("buffer_load_dwordx4 a[0:3], v28, s[16:19], s8 offen")
        vm.issue()
    def rload(i, j):
        a("global_load_dwordx4 a[4:7], v[6:7], off")
        vm.issue()
    if o["rf"] >= 0:
        pos = next(n for n, v in enumerate(vl) if v[:3] == ("q", o["rf"], 7)) + 1
        vl.insert(pos, ("r", 0, 0)); nvs[o["rf"]] += 1
    if o["xpf"]:
        vl.insert(o["xpf"], ("f", 0, 0)); nvs[min(7, max(1, o["xpf"] // (8 + (0 if cx else NX))))] += 1
    unread = set()
    def can_V():
        if not vl: return False
        k, i, j = vl[0]
        if k in "fr": return True
        if k == "p": return bar_done[0] >= PAV(i) and (bar_done[0] >= 7 or 4 * i + j < n_early)
        if k == "x": return i < 3 or bar_done[0] >= i - 2
        return (i - 2, j) not in unread
    def V(n=1):
        for _ in range(n):
            k, i, j = vl.pop(0)
            {"q": qload, "x": xload, "p": pload, "f": fload, "r": rload}[k](i, j)
    if o["x0r"]:
        assert NX == 4 and not cx
        vl.insert(o["x0r"], vl.pop(8))
    V(o["x0r"] or 8)
    a(f"""
    s_mov_b32 s19, s23
    s_mov_b32 s18, 2097152
    v_and_b32 v1, 63, v0
    v_lshrrev_b32 v4, 3, v1          ; r
    v_and_b32 v5, 7, v1              ; s
    v_lshrrev_b32 v6, 1, v4
    v_xor_b32 v5, v5, v6
    v_lshlrev_b32 v5, 4, v5
    v_lshl_add_u32 v{VX}, v4, 10, v5
    s_min_u32 s5, s37, 2
    s_mul_i32 s38, s37, 18
    s_add_u32 s38, s38, s5           ; rt0
    s_lshl_b32 s45, s38, 14
    s_mul_i32 s9, s43, {NX * 1024}
    s_lshl_b32 s5, s9, 3
    s_add_u32 s45, s45, s5           ; x base
    s_and_b32 s5, s41, 7
    s_lshl_b32 s5, s5, 7
    s_add_u32 s{SX[0]}, s45, s5
    """)
    VP2 = VX
    if NX & 1:
        VP2 = 30
        a(f"v_mov_b32 v30, v{VX}\nv_add_u32 v31, 7168, v{VX}\nv_xor_b32 v31, 64, v31")
        a(f"s_and_b32 s5, s43, 1\ns_lshl_b32 s5, s5, 6\nv_xor_b32 v{VX}, s5, v{VX}")
    if o["x0r"]:
        a(f"s_and_b32 s5, s40, 1\ns_lshl_b32 s5, s5, 6\nv_xor_b32 v30, s5, v{VX}\nv_xor_b32 v31, 64, v30")
        V(9 - o["x0r"])
    elif not cx: V(1)
    for i in range(1, 2 if (cx and not NX & 1) else (1 if cx else NX)):
        a(f"v_add_u32 v{VX+i}, {8192*i - 1024*(i & 3)}, v{VX}")
        if i & 1: a(f"v_xor_b32 v{VX+i}, 64, v{VX+i}")
    a(f"""
    v_lshrrev_b32 v4, 3, v2          ; wn
    v_lshlrev_b32 v4, 12, v4
    v_and_b32 v5, 7, v2
    v_lshl_add_u32 v4, v5, 4, v4
    v_lshl_add_u32 v4, v3, 8, v4     ; + h*256
    s_lshr_b32 s5, s43, 1
    s_lshl_b32 s5, s5, 11
    s_and_b32 s6, s43, 1
    s_lshl_b32 s6, s6, 9
    s_add_u32 s5, s5, s6
    v_add_u32 v22, s5, v4
    v_lshlrev_b32 v29, 2, v2
    s_lshl_b32 s5, s43, 3
    s_lshr_b32 s5, s41, s5
    s_and_b32 s6, s5, 7
    s_lshl_b32 s6, s6, 7
    s_bfe_u32 s5, s5, 0x30004
    s_lshl_b32 s5, s5, 7
    s_add_u32 s7, s38, {R1}
    s_lshl_b32 s7, s7, 14
    s_add_u32 s52, s7, s6
    s_add_u32 s53, s7, s5            ; tt=1
    s_lshl_b32 s8, s36, 2
    s_add_u32 s8, s8, s43
    s_lshl_b32 s8, s8, 10
    s_add_u32 s8, s8, s7
    v_lshlrev_b32 v28, 4, v1
    s_lshl_b32 s51, s43, 12
    s_mov_b32 s10, 0
    s_mov_b32 s11, 0x40700000        ; 256.0 (f64)
    s_cmp_lt_u32 s37, 2
    s_cselect_b32 s58, {NP}, {NP - 1}
    s_lshl_b32 s58, s58, 14
    """)
    if o["prot"]:
        a(f"s_and_b32 s5, s40, 3\ns_mul_i32 s5, s5, {NP}\ns_lshr_b32 s5, s5, 2\ns_lshl_b32 s56, s5, 14")
    else:
        a("s_mov_b32 s56, 0")
    for t in range(1, 8):
        a(f"s_bfe_u32 s5, s41, {0x30000 + 4*t:#x}")
        if not cx: a(f"s_lshl_b32 s6, s5, 7\ns_add_u32 s{SX[t]}, s45, s6")
        a(f"s_mul_i32 s5, s5, {64*18432}\ns_add_u32 s{SQ[t]}, s44, s5")
    if o["rf"] >= 0:
        a("s_getpc_b64 s[6:7]")
        a.label("L_pc2")
        a(f"""
        s_and_b32 s5, s4, 1
        s_lshl_b32 s5, s5, 2
        s_add_u32 s5, s5, s43            ; piece 0..7
        s_lshl_b32 s3, s5, 10
        s_cmp_lt_u32 s5, 1
        s_cselect_b32 s5, 0, L_c2-L_p2-1024
        s_add_u32 s3, s3, s5
        s_add_u32 s3, s3, L_p2-L_pc2
        v_add_u32 v6, s3, v28
        v_min_u32 v6, L_last-L_pc2, v6
        v_mov_b32 v7, 0
        v_lshl_add_u64 v[6:7], v[6:7], 0, s[6:7]
        v_and_b32 v6, -16, v6
        """)
    setup_done[0] = True
    ltok = {}; wtok = {}
    def tbase(t):
        a(f"s_bfe_u32 s5, s41, {0x20000 + 4*t + 1:#x}\nv_lshl_add_u32 v24, s5, 12, v29\nv_lshl_add_u32 v25, s5, 12, v29")
    tbase(0)
    V(o["lead"] + o["hold0"] - (8 if cx else 9))
    barrier(True)
    def do_bar(t):
        if not cx:
            while t not in xtok or any(v[0] == "x" and v[1] == t for v in vl):
                assert can_V(); V(); credit[0] -= 1
            vm.wait(xtok[t])
        if t == 7:
            while can_V(): V()
        lg.wait(wtok[t])
        barrier(STB(t)); bar_done[0] = t
    credit = [-float(o["hold0"])]
    ES = o["estep"]; NS = 8 // ES
    cu, cw, cv = o["cu"], o["cw"], o["cv"]
    def fmas(t, es):
        while (t, es[-1]) not in qtok:
            assert can_V(); V(); credit[0] -= 1
        vm.wait(qtok[(t, es[-1])])
        for e in es:
            for i in (0, 2):
                r = QB[t & 1] + 4 * e + i
                a(f"v_fma_f64 v[{r}:{r+1}], v[{r}:{r+1}], s[10:11], v[24:25]")
    def combs(t, hf):
        lg.wait(ltok[(t, 4 * hf + 3)])
        for i in range(4):
            r = 4 * i + 2 * hf
            a(f"v_lshl_add_u64 v[{WV + r}:{WV + r + 1}], v[{LT + r}:{LT + r + 1}], 0, v[{WV + r}:{WV + r + 1}]")
    def look(t, e):
        qb = QB[t & 1]
        for i in range(4):
            off = TAB + (i >> 1) * 128 + (i & 1) * 2
            if e & 1: a(f"ds_read_u16_d16_hi v{LT + 4*i + (e >> 1)}, v{qb + 4*e + i} offset:{off}")
            else:     a(f"ds_read_u16 v{WV + 4*i + (e >> 1)}, v{qb + 4*e + i} offset:{off}")
            ltok[(t, e)] = lg.issue()
        unread.discard((t, e))
    def wri(t, i):
        a(f"ds_write_b128 v22, v[{WV + 4*i}:{WV + 4*i + 3}] offset:{WB + (t & 1) * 16384 + (i & 1) * 1024 + (i >> 1) * 128}")
        wtok[t] = lg.issue()
    unread.update((t, e) for t in range(8) for e in range(8))
    dfr = lambda t: 0 if t == 7 else (o["defer0"] if t == 0 else o["defer"])
    for t in range(8):
        ops = []
        if t == o["ppoff"]: ops.append((0, lambda: a("s_setprio 0")))
        for s in range(NS):
            es = list(range(s * ES, (s + 1) * ES))
            ops.append((2 * ES * cv, lambda es=es: fmas(t, es)))
            for e in es: ops.append((4 * cu, lambda e=e: look(t, e)))
            if t > 0 and s + 1 == dfr(t - 1): ops.append((30, lambda: do_bar(t - 1)))
        ops.append((4 * cv, lambda: combs(t, 0)))
        if t < 7: ops.append((4 + 2*cv, lambda: tbase(t + 1)))
        ops.append((30 + 4 * cv, lambda: combs(t, 1)))
        for i in range(4): ops.append((cw, lambda i=i: wri(t, i)))
        if not dfr(t): ops.append((30, lambda: do_bar(t)))
        tot = sum(c for c, _ in ops)
        nv = nvs[t + 1] if t < 7 else o["n7"]
        for c, fn in ops:
            while credit[0] >= 0.5 and can_V():
                V(); credit[0] -= 1
            fn()
            credit[0] += c * nv / tot
    if o["ppoff"] == 8: a("s_setprio 0")
    a.label("L_p2")
    assert len(vl) == 4 * NP - n_early, (len(vl), n_early)
    for b in range(7, LB):
        lastn = 0
        for _ in range(plan[b]):
            assert can_V()
            if o["skipd"] and vl[0][1] == NP - 1: lastn += 1
            else: V()
        need = max([p for p in range(NP) if opener(p) == b + 1] + [-1])
        if lastn:
            if need >= 0: vm.wait(ptok[need])
            a(f"s_cmp_ge_u32 s37, 2\ns_cbranch_scc1 L_sk{b}")
            n0 = vm.n
            V(lastn)
            vm.n = n0; ptok[NP - 1] = n0 + 1
            a.label(f"L_sk{b}")
        elif need == NP - 1 and o["skipd"]: a("s_waitcnt vmcnt(0)")
        elif need >= 0: vm.wait(ptok[need])
        barrier(STB(b + 1)); bar_done[0] = b + 1
    assert not vl
    a.label("L_pdone")
    if stamps:
        stamp(); a("s_waitcnt vmcnt(0)"); stamp()
    write_stamps(16, "L_ps")
    a.label("L_end")
    a("s_endpgm")
    if o.get("verbose"): print("open", [opener(p) for p in range(NP)], "plan", [plan[b] for b in range(7, LB)], "pav", [PAV(p) for p in range(NP)], "backlog", backlog, nvs, file=sys.stderr)
    return wrap(a.text() + ca.text(), 256, 512, LDS_BYTES, vgpr=256, sgpr=102, accum=128)

if __name__ == "__main__":
    out = sys.argv[1]
    kw = {}
    for x in sys.argv[2:]:
        k, v = x.split("=", 1)
        kw[k] = type(DEF.get(k, 0))(v)
    open(out, "w").write(gen(**kw))
```

```python
import sys, copy
from asmlib import *

NF4B = [0xbf80,0xbf32,0xbf06,0xbeca,0xbe92,0xbe3d,0xbdba,0x0,0x3da3,0x3e25,0x3e7c,0x3ead,0x3ee2,0x3f10,0x3f39,0x3f80]
TAB = 0
LDS_BYTES = 163840

def fill(pre): return list(pre) + [x for x in range(8) if x not in pre]
TABS = {
 "d3": [fill(p) for p in ([1],[2],[3],[0,4],[0,1,5],[0,1,2,6],[0,1,2,3,7])],
 "f2": [fill(p) for p in ([1],[2],[0,3],[1,4],[2,0,5],[0,1,6],[1,0,2,7])],
 "g1": [fill(p) for p in ([1],[2],[0,3],[0,4],[0,5],[1,6],[2,7])],
 "g2": [fill(p) for p in ([0],[1],[2],[3,4],[0,5],[1,6],[2,7])],
 "g3": [fill(p) for p in ([0],[1],[0,2],[1,3],[0,4,1,7],[1,0,5],[0,1,6])],
 "g4": [fill(p) for p in ([0],[1],[2],[3],[4,5],[0,6],[1,7])],
 "h1": [fill(p) for p in ([1],[0,2],[0,1,3],[0,1,4],[0,1,2,5],[0,1,2,3,6],[0,1,2,3,4,7])],
 "h2": [fill(p) for p in ([0],[0],[1,0,2,3,6],[0,2,1,3,4,7],[0,1,3],[0,1,2,4],[0,1,2,5])],
 "h3": [fill(p) for p in ([0],[1],[0,2,1,3,4,7],[0,1,3],[0,1,2,4],[0,1,2,5],[0,1,2,3,6])],
 "g5": [fill(p) for p in ([0],[0],[1,0,2,5],[2,0,1,3,6],[0,3],[0,1,4],[1,0,2,3,4,7])],
}
class Q:
    def __init__(self, a, name, mx):
        self.a, self.name, self.mx = a, name, mx
        self.n = 0; self.done = 0
    def issue(self):
        self.n += 1
        return self.n
    def wait(self, tok):
        if tok <= self.done: return False
        y = self.n - tok
        if y > self.mx - 1:
            y = self.mx - 1; tok = self.n - y
        self.a(f"s_waitcnt {self.name}({y})")
        self.done = tok
        return True
    def drain(self): self.wait(self.n)

DEF = dict(order="d1", xrot=0, stamps=0, prefetch=1, st="nt", R1=10, c22=0, chain=0, G2=4, prot=1,
           lead=11, defer=1, defer0=1, estep=1, cu=12, cw=60, cv=6, ppoff=1, pre=0, pre0=5, n7=10, mix=0, hold0=2,
           LAmin=9, LAmax=14, burst=4, bah=8, hb=16, w7=6, wmax=3, open8=1,
           smax=3, l7=6, lp=4, thr=0, sw=0, stb=0, xpf=0, cx=0, cx0=4, cxs=6, x1at=5, x0e=2, rf=-1, pe=8, st2='', st2from=99, sg=4, sg1=6, lag=2, swap=0, prio2=0, tlb=0, skipd=1, x0r=0, pf1=2, stl=0, frot=0, srate=8.0, smin=2, swin=0, scap=2.0, pt=1, cs=6, xp2=2, idle=1, ppon=4, sstart=0, half=0, e7=0)

def gen(**kw):
    o = dict(DEF); o.update(kw)
    stamps = o["stamps"]; c22 = o["c22"]
    assert not (o["thr"] and o["skipd"])
    R1 = o["R1"]; NP = 19 - R1; SLOT = 2048 * R1; NX = R1 // 2; H = R1 // 2
    pt = o['pt']
    WB = 32768 if pt else 16384
    XA = WB + 32768
    RING0 = LDS_BYTES - 3 * SLOT
    SCL = RING0 - 2048
    def ring(t): return RING0 + SLOT * ((t + 1) % 3)
    nst = [0]
    def mk_tools(a):
        def stamp():
            if stamps:
                r = 68 + 2 * nst[0]; nst[0] += 1
                assert r <= 94
                a(f"s_memtime s[{r}:{r+1}]")
        def barrier(st=False):
            if st and stamps == 2: stamp()
            a("s_barrier")
            if st and stamps == 1: stamp()
        def write_stamps(slot0, lab):
            if not stamps: return
            a("s_memrealtime s[62:63]\ns_waitcnt lgkmcnt(0)")
            a(f"s_and_b32 s3, s42, 3\ns_cmp_lg_u32 s3, {o['sw']}\ns_cbranch_scc1 {lab}")
            a("s_mov_b64 exec, 1\ns_lshl_b32 s3, s2, 8\nv_mov_b32 v1, s3")
            if slot0 == 0:
                a("v_mov_b32 v2, s64\nv_mov_b32 v3, s65\nbuffer_store_dwordx2 v[2:3], v1, s[32:35], 0 offen\ns_nop 1")
            a(f"v_mov_b32 v2, s62\nv_mov_b32 v3, s63\nbuffer_store_dwordx2 v[2:3], v1, s[32:35], 0 offen offset:{8 if slot0 == 0 else 16*8}\ns_nop 1")
            for i in range(14):
                r = 68 + 2 * min(i, nst[0] - 1)
                a(f"s_sub_u32 s4, s{r}, s66\ns_subb_u32 s5, s{r+1}, s67\ns_add_u32 s4, s4, s64\ns_addc_u32 s5, s5, s65")
                a(f"v_mov_b32 v2, s4\nv_mov_b32 v3, s5\nbuffer_store_dwordx2 v[2:3], v1, s[32:35], 0 offen offset:{(slot0 + 2 + i - (1 if slot0 else 0))*8}\ns_nop 1")
            a.label(lab)
        return stamp, barrier, write_stamps
    def prot(a):
        if o["frot"]:
            if o["frot"] == 3: a("s_mul_i32 s5, s40, 11\ns_lshr_b32 s5, s5, 5\ns_mul_i32 s5, s5, 3\ns_sub_u32 s5, s40, s5\ns_mul_i32 s5, s5, 6")
            elif o["frot"] == 4: a("s_and_b32 s5, s40, 3\ns_mul_i32 s5, s5, 19\ns_lshr_b32 s5, s5, 2")
            else: a(f"s_and_b32 s5, s40, 1\ns_mul_i32 s5, s5, {o['frot']}")
            return
        offs = {1: [(i & 3) * NP // 4 for i in range(8)], 2: [(i & 1) * (NP // 2) for i in range(8)], 3: [(i % 3) * NP // 3 for i in range(8)]}[o["prot"]]
        a(f"s_lshl_b32 s5, s40, 2\ns_lshr_b32 s5, {sum(v << (4*i) for i, v in enumerate(offs)):#x}, s5\ns_and_b32 s5, s5, 15")
    def xp2(a):
        a("s_mov_b32 s19, s23\ns_mov_b32 s18, 2097152\ns_lshl_b32 s5, s2, 2\ns_add_u32 s5, s5, s42\ns_lshl_b32 s5, s5, 11\nv_lshlrev_b32 v31, 4, v1")
        a("buffer_load_dwordx4 v[116:119], v31, s[16:19], s5 offen\nbuffer_load_dwordx4 v[120:123], v31, s[16:19], s5 offen offset:1024")
    def korder(a):
        if o["order"] == "d2":
            a("""
            s_lshl_b32 s5, s37, 2
            s_sub_u32 s5, s5, 4
            s_lshl_b32 s5, 270, s5
            s_cmp_eq_u32 s37, 0
            s_cselect_b32 s5, 15, s5
            s_sub_u32 s41, 0x76543210, s5
            """)
        elif o["order"][0] == "e":
            dg = [int(c) for c in o["order"][1:]]
            a(f"""
            s_lshl_b32 s5, s37, 2
            s_lshr_b32 s3, {sum(v << (4*i) for i, v in enumerate(dg)):#x}, s5
            s_and_b32 s3, s3, 3
            s_sub_u32 s5, s5, 4
            s_lshl_b32 s5, 270, s5
            s_cmp_lt_u32 s37, 2
            s_cselect_b32 s5, 0, s5
            s_sub_u32 s41, 0x76543210, s5
            s_mul_i32 s5, s3, 15
            s_cmp_eq_u32 s3, 2
            s_cselect_b32 s5, 270, s5
            s_sub_u32 s41, s41, s5
            """)
        elif o["order"] == "d1":
            a("s_lshl_b32 s5, s37, 2\ns_lshl_b32 s5, 15, s5\ns_sub_u32 s41, 0x76543210, s5")
        elif o["order"] == "rot":
            a("s_mul_i32 s5, s37, 0x11111111\ns_add_u32 s41, s5, 0x76543210\ns_and_b32 s41, s41, 0x77777777")
        elif o["order"] in TABS:
            pk = [sum(st << (4*t) for t, st in enumerate(x)) for x in TABS[o["order"]]]
            a(f"s_mov_b32 s41, {pk[0]:#x}")
            for c in range(1, 7): a(f"s_cmp_eq_u32 s37, {c}\ns_cselect_b32 s41, {pk[c]:#x}, s41")
        else:
            a("s_mov_b32 s41, 0x76543210")
        if o["xrot"]:
            a(f"s_and_b32 s5, s2, {o['xrot']}\ns_mul_i32 s5, s5, 0x11111111\ns_add_u32 s41, s41, s5")
    SX = [47, 61, 96, 97, 98, 99, 100, 101]
    cx = o["cx"]
    units = []
    for u in range(6 if pt else 7):
        hi = XA + 16384 * (u + 1)
        av = -2 if hi <= RING0 else 6 + (hi - 1 - RING0) // SLOT
        if pt and hi > SCL and hi - 16384 < RING0: av = max(av, 6)
        units.append((av, XA + 16384 * u))
    units += [(7, TAB), (7, WB), (8, WB + 16384)] + ([(7, TAB + 16384)] if pt else [])
    units.sort(key=lambda x: x[0])
    def xtile(p): return units[p % 10][1]
    def PAV(p): return units[p][0] if p < 10 else p - 10 + 10
    n_early = 4 * o["pre"] + o["pe"]
    plan = {}; k = n_early
    for b in range(7, 30):
        n = o["l7"] if b == 7 else o["lp"]
        c = 0
        while c < n and k < 4 * NP and PAV(k // 4) <= b: k += 1; c += 1
        plan[b] = c
    def issue_period(p):
        k = n_early
        if 4 * p + 4 <= k: return 6
        for b in range(7, 30):
            k += plan[b]
            if 4 * p + 4 <= k: return b
    def opener(p):
        b = min(8 + p, max(8, issue_period(p) + o["lag"]))
        assert issue_period(p) < b, (p, issue_period(p))
        return b
    LB = opener(NP - 1)
    STB = lambda b: b in ((0, 1, 3, 5, 6, 7, 8, 9, 10, 11, 13) if not o["stb"] else (0, 1, 2, 3, 4, 5, 6, 7, 8, 10, 13))

    a = ca = Asm()
    stamp, barrier, write_stamps = mk_tools(a)
    a.raw(".p2align 6")
    a.label("L_cons")
    lg = Q(a, "lgkmcnt", 15)
    a("s_lshl_b32 s6, s42, 12")
    if pt:
        import numpy as np
        F16 = [int(np.array([b << 16], dtype=np.uint32).view(np.float32).astype(np.float16).view(np.uint16)[0]) for b in NF4B]
        for b, h in zip(NF4B, F16):
            assert np.array([h], dtype=np.uint16).view(np.float16).astype(np.float32).view(np.uint32)[0] == b << 16
        pk = [F16[2*i] | (F16[2*i+1] << 16) for i in range(8)]
        a("v_lshrrev_b32 v12, 3, v1\nv_lshrrev_b32 v13, 1, v12\nv_and_b32 v12, 1, v12\nv_lshlrev_b32 v12, 4, v12")
        for hf in range(2):
            a(f"v_mov_b32 v{14+hf}, {pk[4*hf]:#x}")
        for k in range(1, 4):
            a(f"v_cmp_eq_u32 vcc, {k}, v13\nv_mov_b32 v16, {pk[k]:#x}\nv_mov_b32 v17, {pk[4+k]:#x}")
            a("v_cndmask_b32 v14, v14, v16, vcc\nv_cndmask_b32 v15, v15, v17, vcc")
        a("v_bfe_u32 v14, v14, v12, 16\nv_bfe_u32 v15, v15, v12, 16")
        a(f"s_mov_b32 s8, {pk[0]:#x}\ns_mov_b32 s9, {pk[1]:#x}")
        for w in range(1, 4):
            a(f"s_cmp_eq_u32 s42, {w}\ns_cselect_b32 s8, {pk[2*w]:#x}, s8\ns_cselect_b32 s9, {pk[2*w+1]:#x}, s9")
        a("s_lshl_b32 s5, s42, 13\nv_lshl_add_u32 v30, v1, 4, s5")
        for n in range(8):
            if n % 2 == 0:
                k = n >> 1
                a(f"s_lshl_b32 s5, s{8 + (k >> 1)}, 16" if k % 2 == 0 else f"s_and_b32 s5, s{8 + (k >> 1)}, 0xffff0000")
            r = 16 + 4 * (n % 3)
            for j in range(4): a(f"v_or_b32 v{r+j}, s5, v{14 + (n & 1)}")
            a(f"ds_write_b128 v30, v[{r}:{r+3}] offset:{1024 * n}")
            lg.issue()
        a(f"s_lshl_b32 s5, s42, 9\nv_lshl_add_u32 v30, v2, 1, s5      ; scale write addr")
        a(f"v_add_u32 v30, {SCL}, v30")
    else:
        a("v_lshl_add_u32 v30, v1, 2, s6    ; table write addr")
    VO = 4 + (4 * ((NX + 3) // 4) if cx else 0)
    swap = o['swap'] and c22
    SO = [10, 11, 14, 20, 21, 22, 24, 25, 26, 39, 43, 44, 46, 48, 51, 52, 53, 56, 58]
    FR = o['frot']; U0 = 0 if FR else R1
    assert not (FR and (c22 or cx or o['x0r'] or o['xpf']))
    def rest_setup():
        a(f"""
        v_and_b32 v40, 15, v1            ; m / pos
        v_lshrrev_b32 v41, 4, v1         ; g
        v_lshrrev_b32 v42, 1, v40        ; (m>>1)&7
        v_and_b32 v43, 1, v40
        v_lshl_add_u32 v43, v43, 3, v42  ; sigma
        v_xor_b32 v42, v42, v41
        v_lshlrev_b32 v42, 4, v42
        v_lshl_add_u32 v0, v40, 7, v42   ; m*128 + (g^swz)*16
        s_and_b32 s7, s42, {1 if c22 else 0}
        s_mul_i32 s8, s7, {H * 2048}
        s_add_u32 s5, s8, {RING0}
        v_add_u32 v0, s5, v0
        v_xor_b32 v1, 64, v0
        v_lshlrev_b32 v43, 4, v43
        v_lshl_add_u32 v43, v41, 8, v43
        v_add_u32 v2, s6, v43
        v_xor_b32 v3, 4096, v2
        s_mov_b32 s31, s23
        s_mov_b32 s30, 18874368
        v_mul_u32_u24 v41, {4 * 9216}, v41
        v_lshl_add_u32 v{VO}, v40, 2, v41
        v_add_u32 v{VO+1}, 9216, v{VO}
        v_add_u32 v{VO+2}, {2*9216}, v{VO}
        v_add_u32 v{VO+3}, {3*9216}, v{VO}
        s_min_u32 s5, s37, 2
        s_mul_i32 s38, s37, 18
        s_add_u32 s38, s38, s5           ; rt0
        s_mul_i32 s50, s38, {16*9216}
        s_lshl_b32 s5, s36, 8
        s_add_u32 s50, s50, s5
        s_lshl_b32 s5, s42, 6
        s_add_u32 s50, s50, s5
        s_add_u32 s49, s50, {U0 * 16 * 9216}
        s_mul_i32 s7, s7, {H * 16 * 9216}
        s_add_u32 s15, s50, s7
        s_xor_b32 s13, s15, 64
        """)
        if swap:
            a(f"""
            s_andn2_b32 s15, s15, 64
            s_add_u32 s13, s15, {4 * 9216}
            v_lshrrev_b32 v42, 8, v2
            v_xor_b32 v43, s42, v42
            v_and_b32 v43, 1, v43
            v_lshlrev_b32 v43, 6, v43
            v_lshl_add_u32 v43, v40, 2, v43
            v_bfe_u32 v42, v42, 1, 1
            v_mul_u32_u24 v42, {8 * 9216}, v42
            v_add_u32 v{VO+4}, v42, v43
            v_add_u32 v{VO+5}, 9216, v{VO+4}
            v_add_u32 v{VO+6}, {2*9216}, v{VO+4}
            v_add_u32 v{VO+7}, {3*9216}, v{VO+4}
            """)
        a(f"""
        s_cmp_lt_u32 s37, 2
        s_cselect_b32 s59, {19 - U0}, {18 - U0}
        s_mul_i32 s59, s59, 147456
        """)
        if o["prot"]:
            prot(a); a("s_mul_i32 s57, s5, 147456")
        else:
            a("s_mov_b32 s57, 0")
        for p in range(19 - U0):
            if p: a("s_add_u32 s57, s57, 147456\ns_cmp_eq_u32 s57, s59\ns_cselect_b32 s57, 0, s57")
            a(f"s_add_u32 s{SO[p]}, s57, s49")
        if o["tlb"]:
            a(f"s_mul_i32 s5, s42, {95 * 9216}\ns_add_u32 s5, s5, s50\ns_mov_b64 exec, 1")
            a(f"buffer_load_dword a95, v{VO}, s[28:31], s5 offen\ns_mov_b64 exec, -1")
            vmc.issue()
    vmc = Q(a, "vmcnt", 63); xtk = {}; xfull = {}
    VC = 4
    if cx:
        korder(a)
        a(f"""
        s_mov_b32 s19, s23
        s_mov_b32 s18, 2097152
        v_lshrrev_b32 v12, 3, v1         ; r
        v_and_b32 v13, 7, v1             ; s
        v_lshrrev_b32 v15, 1, v12
        v_xor_b32 v13, v13, v15
        v_lshlrev_b32 v13, 4, v13
        v_lshl_add_u32 v{VC}, v12, 10, v13
        s_min_u32 s5, s37, 2
        s_mul_i32 s38, s37, 18
        s_add_u32 s38, s38, s5           ; rt0
        s_lshl_b32 s45, s38, 14
        s_mul_i32 s9, s42, {NX * 1024}
        s_lshl_b32 s5, s9, 3
        s_add_u32 s45, s45, s5           ; x base
        """)
        if NX & 1: a(f"s_and_b32 s5, s42, 1\ns_lshl_b32 s5, s5, 6\nv_xor_b32 v{VC}, s5, v{VC}")
        for i in range(1, NX):
            a(f"v_add_u32 v{VC+i}, {8192*i - 1024*(i & 3)}, v{VC}")
            if i & 1: a(f"v_xor_b32 v{VC+i}, 64, v{VC+i}")
        sxs = lambda t: a(f"s_bfe_u32 s5, s41, {0x30000 + 4*t:#x}\ns_lshl_b32 s5, s5, 7\ns_add_u32 s{SX[t]}, s45, s5")
        sxs(0)
        a(f"s_add_u32 m0, s9, {ring(0)}")
    xq = [(t, i) for t in range(8) for i in range(NX)] if cx else []
    def cxload():
        t, i = xq.pop(0)
        if a.lines[-1].strip().startswith("s_add_u32 m0"): a("s_nop 0")
        a(f"buffer_load_dwordx4 v{VC+i}, s[16:19], s{SX[t]} offen offset:{1024*(i & 3)} lds")
        xtk[t] = vmc.issue()
        if i == NX - 1: xfull[t] = xtk[t]
        if xq and (xq[0][1] & 3) == 0: a(f"s_add_u32 m0, s9, {ring(xq[0][0]) + 1024 * xq[0][1]}")
    if not cx: o["x0e"] = 0
    for _ in range(o["x0e"]): cxload()
    a(f"""
    s_waitcnt vmcnt({o["x0e"] + (2 if o["xp2"] == 1 else 0)})
    """)
    if pt:
        a("v_lshlrev_b32 v32, 16, v28\nv_and_b32 v33, 0xffff0000, v28\nds_write_b64 v30, v[32:33]")
        lg.issue()
    else:
        a("v_lshlrev_b32 v29, 16, v28\nv_and_b32 v28, 0xffff0000, v28")
    for q in range(0 if pt else 16):
        r = 12 + (q % 8) * 2
        c = NF4B[q] << 16
        a(f"v_mul_f32 v{r}, {hex(c)}, v29\nv_mul_f32 v{r+1}, {hex(c)}, v28\nv_cvt_pk_bf16_f32 v{r}, v{r}, v{r+1}")
        if q & 1:
            a(f"ds_write2st64_b32 v30, v{r-2}, v{r} offset0:{q-1} offset1:{q}")
            lg.issue()
    lg.drain()
    barrier(True)
    if o["xp2"] == 2: xp2(a)
    if cx:
        for _ in range(NX - o["x0e"]): cxload()
        for t in range(1, 8): sxs(t)
    rest_setup()
    if cx:
        for _ in range(o["x1at"]): cxload()
        vmc.wait(NX)
    ACC = 128 - 8 * R1
    M = []; L = {}
    for t in range(8):
        for kk in range(2):
            for j in range(2):
                off = WB + (t & 1) * 16384 + kk * 2048 + j * 1024
                L[("w", t, kk, j, 0)] = dict(grp=t, base=2, off=off, fixed=f"a{16*t + 8*kk + 4*j}")
                if c22:
                    fx = None
                    if t in (0, 2, 4): fx = f"a{96 + 8*kk + 4*j}"
                    if t in (1, 3, 6): fx = f"a{112 + 8*kk + 4*j}"
                    L[("w", t, kk, j, 1)] = dict(grp=t, base=3, off=off, fixed=fx)
        ng = H if c22 else R1
        for i in range(ng):
            for kk in range(2):
                L[("x", t, i, kk)] = dict(grp=t, base=kk, ad=ring(t) + i * 2048, g0=ring(t), fixed=None)
            if c22:
                sp = (t == 6 and i == ng - 1) or (t == 7 and i == 0)
                pars = [1, 0] if sp else [0, 1]
                if o["chain"] or sp: seq = [(par, j, kk) for par in pars for j in range(2) for kk in range(2)]
                else: seq = [(par, j, kk) for kk in range(2) for par in pars for j in range(2)]
            else:
                seq = [(0, j, kk) for j in range(2) for kk in range(2)]
            for n, (par, j, kk) in enumerate(seq):
                u = 2 * i + par if c22 else i
                m = dict(W=("w", t, kk, j, par), X=("x", t, i, kk), acc=(u, j), first=(t == 0 and kk == 0), end=None)
                if t == 7 and not any(p2 == par for (p2, _, _) in seq[n + 1:]): m["end"] = u
                M.append(m)
    N1 = len(M)
    G2 = o["G2"]
    for p in range(NP):
        for g0 in range(0, 16, G2):
            for k in range(g0, g0 + G2):
                L[("x", 8 + p, k)] = dict(grp=opener(p), base=k & 1, ad=xtile(p) + (k >> 1) * 2048, g0=xtile(p), fixed=None, ph2=True)
            for j in range(2):
                for k in range(g0, g0 + G2):
                    M.append(dict(W=("w", k >> 1, k & 1, j, 0), X=("x", 8 + p, k), acc=(R1 + p, j), first=(k == 0),
                                  end=(R1 + p if (j == 1 and k == 15) else None)))
    first_use = {}; last_use = {}
    for n, m in enumerate(M):
        for k in (m["W"], m["X"]):
            first_use.setdefault(k, n); last_use[k] = n
    lq = sorted(L.keys(), key=lambda k: (first_use[k], k[0] != "w"))
    occ = {}
    for k in lq:
        fx = L[k]["fixed"]
        if fx:
            L[k]["avail"] = last_use[occ[fx]] if fx in occ else -1
            occ[fx] = k
    free = [f"v{4*i}" for i in range(VO // 4 + (2 if swap else 1), ACC // 4)]
    reg = {}; tok = {}; iss_at = {}
    accreg = {(u, j): ACC + 8 * u + 4 * j for u in range(R1) for j in range(2)}
    barn = [-1]; cur = [-1]; lastb = [0]
    base = [RING0, RING0]; inph2 = [False, False]
    def rq(r): return f"{r[0]}[{int(r[1:])}:{int(r[1:])+3}]"
    opt = {}
    def lds_issue():
        tk = lg.issue(); opt[tk] = cur[0]
        return tk
    def try_load(la=None, keep=0):
        for qi, k in enumerate(lq[:6]):
            l = L[k]
            if l["grp"] > barn[0]: return False
            if la is not None and first_use[k] - cur[0] > la: return False
            if l["fixed"]:
                if l["avail"] > cur[0]: continue
                r = l["fixed"]
            else:
                if len(free) <= keep: continue
                if k[0] == "x" and any(k2[0] == "x" for k2 in lq[:qi]): continue
                r = free.pop(0)
            b = l["base"]
            if k[0] == "x":
                if l.get("ph2") and not inph2[b]:
                    if b == 0: a(f"s_sub_u32 s12, {(l['g0'] - base[b]) & 0xffffffff:#x}, s8")
                    a(f"v_add_u32 v{b}, s12, v{b}"); base[b] = l["g0"]; inph2[b] = True
                elif not (0 <= l["ad"] - base[b] <= 65535):
                    nb = l["g0"] if l.get("ph2") else (RING0 if l["ad"] < base[b] else RING0 + 16384)
                    a(f"v_add_u32 v{b}, {(nb - base[b]) & 0xffffffff:#x}, v{b}"); base[b] = nb
                off = l["ad"] - base[b]
            else: off = l["off"]
            a(f"ds_read_b128 {rq(r)}, v{b} offset:{off}")
            reg[k] = r; tok[k] = lds_issue(); iss_at[k] = cur[0]
            lq.pop(qi)
            return True
        return False
    epi_c = []; epi_w = []; wr = {}; cdone = set(); relq = []; pubat = {}; pub = {}
    ended = set()
    def add_epi(u):
        lo, hi = accreg[(u, 0)], accreg[(u, 1)]
        li = len(a.lines)
        pair = c22 and u < R1
        for i in range(4):
            epi_c.append([li, f"v_cvt_pk_bf16_f32 v{lo+i}, v{lo+i}, v{hi+i}", f"v{hi}" if i == 3 else None, [(u, i)] if not (pair and swap) else []])
        ended.add(u)
        if not pair:
            pos = len(epi_w)
            if o["prio2"] and u >= R1:
                pos = 0
                while pos < len(epi_w) and (skey(epi_w[pos][0]) == so[0] or epi_w[pos][0] >= R1): pos += 1
            epi_w[pos:pos] = [(u, i) for i in range(4)]
        elif (u ^ 1) in ended:
            e = u & ~1
            if swap:
                for i in range(4):
                    epi_c.append([li, f"v_permlane16_swap_b32 v{accreg[(e, 0)]+i}, v{accreg[(e+1, 0)]+i}", None, [(e, i), (e + 1, i)]])
            epi_w.extend((e + k, i) for i in range(4) for k in range(2))
    so = [None]; lasts = [-99]; scred = [1.0]
    skey = lambda u: (u & ~1) if (c22 and u < R1) else u
    def set_so():
        if not epi_w or so[0] == skey(epi_w[0][0]): return False
        u = so[0] = skey(epi_w[0][0])
        if u >= U0: return False
        elif c22: a(f"s_add_u32 s55, s15, {(u >> 1) * 147456}\ns_add_u32 s54, s13, {(u >> 1) * 147456}")
        else: a(f"s_add_u32 s55, s50, {u * 147456}")
        return True
    def w_ok(): return epi_w and epi_w[0] in cdone
    def do_w():
        set_so()
        u, i = epi_w.pop(0); lo = accreg[(u, 0)]
        pair = c22 and u < R1
        vo = VO + (4 if (pair and swap) else 0) + i
        a(f"buffer_store_dword v{lo+i}, v{vo}, s[28:31], {f's{SO[u - U0]}' if u >= U0 else ('s54' if (pair and u & 1) else 's55')} offen {(o['st'] if u < o['st2from'] else o['st2']).replace('_', ' ')}")
        lasts[0] = cur[0]
        if pair and not swap: lasts[0] += (o["sg"] - 1) if (u & 1) else -(o["sg"] - 1)
        if i == 3: relq.append((cur[0] + 2, f"v{lo}"))
    def try_c(force=False):
        if not epi_c: return False
        li, txt, rel, key = epi_c[0]
        dist = len(a.lines) - li
        if dist < 8:
            if not force: return False
            a(f"s_nop {8 - dist - 1}")
        if txt.startswith("v_permlane"):
            regs = txt.split()[1:]
            back = [l for l in a.lines[-2:] if l.strip().startswith("v_cvt") and l.split()[1].rstrip(",") in (regs[0].rstrip(","), regs[1])]
            if back:
                if not force: return False
                a("s_nop 1")
        a(txt); epi_c.pop(0); cdone.update(key)
        if rel: free.append(rel)
        return True
    def finish(lab):
        set_so()
        while epi_w:
            while epi_w[0] not in cdone or (len(epi_w) > 1 and epi_w[1] not in cdone): assert try_c(True)
            do_w()
        if stamps:
            stamp(); a("s_waitcnt vmcnt(0)")
        write_stamps(0, lab)
        a("s_endpgm")
    bpos = {}
    for g in range(8): bpos[4 * R1 * (g + 1) - o["bah"]] = g + 1
    for p in range(LB - 8): bpos[N1 + 32 * p + o["hb"]] = 9 + p
    barrier(True); barn[0] = 0
    for _ in range(10): try_load()
    for n, m in enumerate(M):
        if n in bpos:
            g = bpos[n]
            if g <= 8:
                mine = [k for k in L if L[k]["grp"] == g - 1 and not L[k].get("ph2")]
                while any(k not in tok for k in mine): assert try_load(), (g, lq[:3], free)
                lg.wait(max(tok[k] for k in mine))
                if o["tlb"] and not cx and g == 3: vmc.drain()
                if cx and g < 8:
                    while xq and xq[0][0] <= g: cxload()
                    vmc.wait(xfull[g])
                if cx and g == 7: free.extend(f"v{4*i}" for i in range(1, 1 + (NX + 3) // 4))
            barrier(STB(g))
            barn[0] = g; lastb[0] = n
            if g == 8:
                a.label("L_c2")
                for e in epi_c: e[0] += 1
            if g <= 8:
                for _ in range(o["burst"]): try_load(o["LAmax"])
        for k in (m["W"], m["X"]):
            while k not in tok: assert try_load(), (n, k, free)
        need = max(tok[m["W"]], tok[m["X"]])
        if need > lg.done:
            for m2 in M[n + 1:n + 4]:
                for k in (m2["W"], m2["X"]):
                    if k in tok and n - iss_at[k] >= 7: need = max(need, tok[k])
            lg.wait(need)
        while relq and relq[0][0] <= n: free.append(relq.pop(0)[1])
        if o["xp2"] and n == 4 * (R1 - 2): a("s_waitcnt vmcnt(0)")
        if m["acc"] not in accreg: accreg[m["acc"]] = int(free.pop(0)[1:])
        d = accreg[m["acc"]]
        c = "0" if m["first"] else f"v[{d}:{d+3}]"
        a(f"v_mfma_f32_16x16x32_bf16 v[{d}:{d+3}], {rq(reg[m['X']])}, {rq(reg[m['W']])}, {c}")
        cur[0] = n
        for k in (m["W"], m["X"]):
            if last_use[k] == n and not L[k]["fixed"]: free.append(reg[k])
        if m["end"] is not None:
            add_epi(m["end"])
            if m["end"] == R1 + NP - 2:
                a("s_cmp_ge_u32 s37, 2\ns_cbranch_scc0 L_c19")
                sv = copy.deepcopy((epi_c, epi_w, nst[0], free, cdone, relq, so, lasts))
                finish("L_cs1")
                epi_c[:] = [[len(a.lines) + 1] + e[1:] for e in sv[0]]; epi_w[:] = sv[1]; nst[0] = sv[2]
                free[:] = sv[3]; cdone.clear(); cdone.update(sv[4]); relq[:] = sv[5]; so[:] = sv[6]; lasts[:] = sv[7]
                a.label("L_c19")
        keep = 2 if n >= N1 - 12 else 0
        margin = first_use[lq[0]] - n if (lq and L[lq[0]]["grp"] <= barn[0]) else 99
        wantw = w_ok() and (epi_w[0][0] >= U0 or so[0] == skey(epi_w[0][0])) and n - lasts[0] >= (o["sg"] if len(epi_w) > 4 else o["sg1"])
        if o["srate"]:
            if epi_w: scred[0] = min(o["scap"], scred[0] + o["srate"] / 32)
            inwin = not (7 <= barn[0] < LB - 1) or n - lastb[0] >= o["swin"]
            wantw = w_ok() and (epi_w[0][0] >= U0 or so[0] == skey(epi_w[0][0])) and n - lasts[0] >= o["smin"] and scred[0] >= 1 and inwin and n >= N1 - 4 * R1 + o['sstart']
        did = False
        if margin <= o["LAmin"] or n % 2 == 0 or (n < N1 and not wantw): did = try_load(o["LAmax"], keep)
        if not did and wantw: do_w(); scred[0] -= 1; continue
        if xq and xq[0][0] <= barn[0] + 2:
            rel = n - (lastb[0] + o["cx0"])
            step = o["cxs"] if xq[0][0] == barn[0] + 2 and barn[0] > 0 else max(2, o["cxs"] // 2)
            if rel >= 0 and rel % step == 0: cxload()
        if not (not did and set_so()): try_c()
    backlog = len(epi_w)
    finish("L_cs2")
    a.label("L_last")
    a.raw(".fill 256, 4, 0xbf800000")

    a = Asm()
    nst[0] = 0
    stamp, barrier, write_stamps = mk_tools(a)
    a("s_load_dwordx2 s[24:25], s[0:1], 16")
    a("s_load_dwordx2 s[20:21], s[0:1], 8")
    a("s_load_dwordx2 s[16:17], s[0:1], 0")
    a("s_load_dwordx2 s[28:29], s[0:1], 24")
    if stamps:
        a("s_load_dwordx2 s[32:33], s[0:1], 40\ns_memrealtime s[64:65]\ns_memtime s[66:67]")
        a("s_mov_b32 s34, 0x100000\ns_mov_b32 s35, 0x00020000")
    a("""
    v_readfirstlane_b32 s42, v0
    s_and_b32 s3, s2, 1
    s_lshl_b32 s3, s3, 5
    s_lshr_b32 s4, s2, 3            ; idx
    s_add_u32 s3, s3, s4            ; u
    s_cmp_ge_u32 s4, 32
    s_cselect_b32 s3, 63, s3
    s_cmp_ge_u32 s3, 63
    s_cbranch_scc1 L_idle
    s_mul_i32 s40, s3, 37
    s_lshr_b32 s40, s40, 8          ; sl = u/7
    s_mul_i32 s6, s40, 7
    s_sub_u32 s37, s3, s6           ; ms
    s_bfe_u32 s6, s2, 0x20001       ; p
    s_mul_i32 s6, s6, 9
    s_add_u32 s36, s6, s40          ; strip
    s_lshr_b32 s42, s42, 6
    v_and_b32 v2, 31, v0            ; c4
    v_bfe_u32 v3, v0, 5, 1          ; h
    s_mov_b32 s23, 0x00020000
    s_cmp_ge_u32 s42, 4
    s_cbranch_scc1 L_prod
    v_and_b32 v1, 63, v0
    """)
    if o["prefetch"]:
        if o["pf1"]: a(f"s_cmp_ge_u32 s42, {o['pf1']}\ns_cbranch_scc1 L_nopf")
        a("s_getpc_b64 s[6:7]")
        a.label("L_pc")
        if o["pf1"] == 1: a("s_lshl_b32 s8, s4, 10")
        elif o["pf1"] == 2: a("s_and_b32 s8, s4, 15\ns_lshl_b32 s8, s8, 11")
        else: a("s_and_b32 s8, s4, 7\ns_lshl_b32 s8, s8, 12")
        a(f"v_lshl_add_u32 v4, v0, 4, s8\nv_min_u32 v4, (L_last-L_pc)&0xfffffff0, v4")
        a(f"s_and_b32 s6, s6, 0xffffff80\nv_mov_b32 v5, 0\nv_lshl_add_u64 v[4:5], v[4:5], 0, s[6:7]")
        a("global_load_dwordx4 v[124:127], v[4:5], off")
        a.label("L_nopf")
    a("""
    s_mov_b32 s27, s23
    s_mov_b32 s26, 36864
    v_lshlrev_b32 v2, 3, v2
    v_lshl_add_u32 v2, v3, 2, v2     ; c4*8 + ih*4
    s_mul_i32 s5, s42, 9216
    s_lshl_b32 s6, s36, 8
    s_add_u32 s5, s5, s6
    """)
    if o["stl"]:
        a("s_lshl_b32 s8, s42, 22\ns_min_u32 s8, s8, 9437180\ns_add_u32 s9, s8, 0x200000\ns_min_u32 s9, s9, 9437180")
        if o["stl"] & 4:
            a(f"s_mul_i32 s10, s37, {18*16*9216}\ns_mul_i32 s11, s42, {105*9216}\ns_add_u32 s10, s10, s11\ns_min_u32 s10, s10, 18874364")
    a("s_waitcnt lgkmcnt(0)")
    if o["stl"] & 8: a("buffer_load_dword v28, v2, s[24:27], s5 offen")
    if o["stl"] & 1: a("s_load_dword s12, s[16:17], 0")
    if o["stl"] & 2: a("s_load_dword s13, s[20:21], s8\ns_load_dword s14, s[20:21], s9")
    if o["stl"] & 4: a("s_load_dword s15, s[28:29], s10")
    if not o["stl"] & 8: a("buffer_load_dword v28, v2, s[24:27], s5 offen")
    if o["xp2"] == 1: xp2(a)
    a("s_branch L_cons")

    a.label("L_prod")
    lg = Q(a, "lgkmcnt", 15); vm = Q(a, "vmcnt", 63)
    QB = [64, 96]; WV = 32; LT = 48; VQ = 8; VX = 16
    a("s_setprio 1\ns_sub_u32 s43, s42, 4\ns_mov_b32 s22, 9437184")
    korder(a)
    a(f"""
    v_mul_u32_u24 v4, 147456, v3
    v_lshl_add_u32 v{VQ}, v2, 4, v4
    s_lshl_b32 s44, s36, 9
    s_mul_i32 s5, s43, {16*18432}
    s_add_u32 s44, s44, s5           ; q base
    s_movk_i32 s7, 18432
    """)
    qtok = {}; xtok = {}; ptok = {}
    SQ = [46, 12, 13, 14, 15, 39, 48, 60]
    m0p = [None]
    def need_m0(val):
        if m0p[0] != val:
            a(f"s_add_u32 m0, {val[0]}, {val[1]}"); m0p[0] = val
    def m0_of(k, i, j):
        if k == "x": return ("s9", ring(i) + (4096 if j >= 4 else 0))
        if k == "p": return ("s51", xtile(i) + 2048 * (j >> 1))
    def dma(txt):
        if a.lines[-1].strip().startswith("s_add_u32 m0"): a("s_nop 0")
        a(txt)
        nx = next((v for v in vl if v[0] in "xp"), None)
        if nx and setup_done[0]: need_m0(m0_of(*nx))
    setup_done = [False]
    def qload(t, e):
        if e == 0 and t == 0:
            a(f"s_and_b32 s5, s41, 7\ns_mul_i32 s5, s5, {64*18432}\ns_add_u32 s{SQ[0]}, s44, s5")
            a("s_waitcnt lgkmcnt(0)")
        if t == 0 and e > 0: a(f"v_add_u32 v{VQ+e}, s7, v{VQ+e-1}")
        d = QB[t & 1] + 4 * e
        a(f"buffer_load_dwordx4 v[{d}:{d+3}], v{VQ+e}, s[20:23], s{SQ[t]} offen")
        qtok[(t, e)] = vm.issue()
    bar_done = [-2]
    def xload(t, i):
        assert t < 3 or bar_done[0] >= t - 2, (t, bar_done)
        if t == 0 and o["x0r"]:
            a(f"s_add_u32 s5, s40, {i}\ns_and_b32 s5, s5, 3\ns_lshl_b32 s5, s5, 10\ns_add_u32 s6, s5, {ring(0)}\ns_add_u32 m0, s6, s9")
            a(f"s_lshl_b32 s5, s5, 3\ns_add_u32 s3, s5, s{SX[0]}")
            m0p[0] = None
            a(f"buffer_load_dwordx4 v{30 + (i & 1)}, s[16:19], s3 offen lds")
            xtok[t] = vm.issue()
            return
        need_m0(m0_of("x", t, i))
        dma(f"buffer_load_dwordx4 v{VX+i}, s[16:19], s{SX[t]} offen offset:{1024*(i & 3)} lds")
        xtok[t] = vm.issue()
    dtok = []
    def pload(p, i):
        assert bar_done[0] >= PAV(p), (p, bar_done)
        tt, hh = i >> 1, i & 1
        need_m0(m0_of("p", p, i))
        if i == 0 and p > 0:
            a("s_add_u32 s56, s56, 16384\ns_cmp_eq_u32 s56, s58\ns_cselect_b32 s56, 0, s56")
        if hh == 0: a(f"s_add_u32 s54, s{52+tt}, s56")
        if bar_done[0] >= 7 and o["thr"] and len(dtok) >= o["thr"]: vm.wait(dtok[-o["thr"]])
        dma(f"buffer_load_dwordx4 v{VP2+hh}, s[16:19], s54 offen offset:{1024*hh} lds")
        ptok[p] = vm.issue(); dtok.append(ptok[p])
    vl = []; nvs = []
    pl = [("p", p, i) for p in range(NP) for i in range(4)]
    npre = 4 * o["pre"]
    for t in range(8):
        qs = [("q", t, e) for e in range(8)]; xs = [("x", t, i) for i in range(0 if cx else NX)]
        if o["pre0"] <= t < 7:
            k = -(-npre // (7 - t)); k += k & 1; k = min(k, npre); npre -= k
            xs += pl[:k]; pl = pl[k:]
        if o["mix"] and t > 0:
            mixed = []
            while qs or xs:
                if qs: mixed.append(qs.pop(0))
                if xs and len(xs) >= len(qs): mixed.append(xs.pop(0))
            cu_ = mixed
        else: cu_ = qs + xs
        vl += cu_; nvs.append(len(cu_))
    vl += pl
    def fload(i, j):
        a("buffer_load_dwordx4 a[0:3], v28, s[16:19], s8 offen")
        vm.issue()
    def rload(i, j):
        a("global_load_dwordx4 a[4:7], v[6:7], off")
        vm.issue()
    if o["rf"] >= 0:
        pos = next(n for n, v in enumerate(vl) if v[:3] == ("q", o["rf"], 7)) + 1
        vl.insert(pos, ("r", 0, 0)); nvs[o["rf"]] += 1
    if o["xpf"]:
        vl.insert(o["xpf"], ("f", 0, 0)); nvs[min(7, max(1, o["xpf"] // (8 + (0 if cx else NX))))] += 1
    unread = set()
    def can_V():
        if not vl: return False
        k, i, j = vl[0]
        if k in "fr": return True
        if k == "p": return bar_done[0] >= PAV(i) and (bar_done[0] >= 7 or 4 * i + j < n_early)
        if k == "x": return i < 3 or bar_done[0] >= i - 2
        return (i - 2, j) not in unread
    def V(n=1):
        for _ in range(n):
            k, i, j = vl.pop(0)
            {"q": qload, "x": xload, "p": pload, "f": fload, "r": rload}[k](i, j)
    if o["x0r"]:
        assert NX == 4 and not cx
        vl.insert(o["x0r"], vl.pop(8))
    V(o["x0r"] or 8)
    a(f"""
    s_mov_b32 s19, s23
    s_mov_b32 s18, 2097152
    v_and_b32 v1, 63, v0
    v_lshrrev_b32 v4, 3, v1          ; r
    v_and_b32 v5, 7, v1              ; s
    v_lshrrev_b32 v6, 1, v4
    v_xor_b32 v5, v5, v6
    v_lshlrev_b32 v5, 4, v5
    v_lshl_add_u32 v{VX}, v4, 10, v5
    s_min_u32 s5, s37, 2
    s_mul_i32 s38, s37, 18
    s_add_u32 s38, s38, s5           ; rt0
    s_lshl_b32 s45, s38, 14
    s_mul_i32 s9, s43, {NX * 1024}
    """)
    if FR:
        prot(a)
        a(f"""
        s_cmp_lt_u32 s37, 2
        s_cselect_b32 s58, 19, 18
        s_add_u32 s56, s5, {R1}
        s_cmp_ge_u32 s56, s58
        s_cselect_b32 s6, s58, 0
        s_sub_u32 s56, s56, s6
        s_sub_u32 s16, s16, 4096         ; descriptor starts 4 KiB early, every lane offset adds it back
        s_subb_u32 s17, s17, 0
        s_mov_b32 s18, {2097152 + 4096}
        v_add_u32 v30, 4096, v{VX}
        v_add_u32 v31, {4096 + 7168}, v{VX}
        v_xor_b32 v31, 64, v31
        s_lshl_b32 s5, s5, 1
        s_mul_i32 s6, s43, {NX}
        s_add_u32 s8, s5, s6
        s_lshl_b32 s3, s58, 1
        """)
        def vxfr(i):
            if i: a("s_add_u32 s8, s8, 1")
            a(f"""
            s_cmp_ge_u32 s8, s3
            s_cselect_b32 s6, s3, 0
            s_sub_u32 s8, s8, s6
            s_lshl_b32 s5, s8, 13
            s_sub_u32 s5, s5, {1024 * (i & 3)}
            s_and_b32 s6, s8, 1
            s_lshl_b32 s6, s6, 6
            v_xor_b32 v{VX+i}, s6, v30
            v_add_u32 v{VX+i}, s5, v{VX+i}
            """)
        vxfr(0)
        a("s_mov_b32 s5, 0")
    else:
        a("s_lshl_b32 s5, s9, 3")
    a(f"""
    s_add_u32 s45, s45, s5           ; x base
    s_and_b32 s5, s41, 7
    s_lshl_b32 s5, s5, 7
    s_add_u32 s{SX[0]}, s45, s5
    """)
    VP2 = 30 if FR else VX
    if NX & 1 and not FR:
        VP2 = 30
        a(f"v_mov_b32 v30, v{VX}\nv_add_u32 v31, 7168, v{VX}\nv_xor_b32 v31, 64, v31")
        a(f"s_and_b32 s5, s43, 1\ns_lshl_b32 s5, s5, 6\nv_xor_b32 v{VX}, s5, v{VX}")
    if o["x0r"]:
        a(f"s_and_b32 s5, s40, 1\ns_lshl_b32 s5, s5, 6\nv_xor_b32 v30, s5, v{VX}\nv_xor_b32 v31, 64, v30")
        V(9 - o["x0r"])
    elif not cx: V(1)
    for i in range(1, 2 if (cx and not NX & 1) else (1 if cx else NX)):
        if FR:
            vxfr(i); continue
        a(f"v_add_u32 v{VX+i}, {8192*i - 1024*(i & 3)}, v{VX}")
        if i & 1: a(f"v_xor_b32 v{VX+i}, 64, v{VX+i}")
    a(f"""
    v_lshrrev_b32 v4, 3, v2          ; wn
    v_lshlrev_b32 v4, 12, v4
    v_and_b32 v5, 7, v2
    v_lshl_add_u32 v4, v5, 4, v4
    v_lshl_add_u32 v4, v3, 8, v4     ; + h*256
    s_lshr_b32 s5, s43, 1
    s_lshl_b32 s5, s5, 11
    s_and_b32 s6, s43, 1
    s_lshl_b32 s6, s6, 9
    s_add_u32 s5, s5, s6
    v_add_u32 v22, s5, v4
    v_lshlrev_b32 v29, 2, v2
    s_lshl_b32 s5, s43, 3
    s_lshr_b32 s5, s41, s5
    s_and_b32 s6, s5, 7
    s_lshl_b32 s6, s6, 7
    s_bfe_u32 s5, s5, 0x30004
    s_lshl_b32 s5, s5, 7
    s_add_u32 s7, s38, {U0}
    s_lshl_b32 s7, s7, 14
    s_add_u32 s52, s7, s6
    s_add_u32 s53, s7, s5            ; tt=1
    """)
    if o["xpf"]: a("s_lshl_b32 s8, s36, 2\ns_add_u32 s8, s8, s43\ns_lshl_b32 s8, s8, 10\ns_add_u32 s8, s8, s7")
    if o["xpf"] or o["rf"] >= 0: a("v_lshlrev_b32 v28, 4, v1")
    a(f"""
    s_lshl_b32 s51, s43, 12
    s_mov_b32 s10, 0
    s_mov_b32 s11, {0x40600000 if pt else 0x40700000:#x}        ; 128.0 / 256.0 (f64)
    """)
    if not FR: a(f"s_cmp_lt_u32 s37, 2\ns_cselect_b32 s58, {NP}, {NP - 1}")
    a("s_lshl_b32 s58, s58, 14")
    if FR: a("s_lshl_b32 s56, s56, 14")
    elif o["prot"]:
        prot(a); a("s_lshl_b32 s56, s5, 14")
    else:
        a("s_mov_b32 s56, 0")
    for t in range(1, 8):
        a(f"s_bfe_u32 s5, s41, {0x30000 + 4*t:#x}")
        if not cx: a(f"s_lshl_b32 s6, s5, 7\ns_add_u32 s{SX[t]}, s45, s6")
        a(f"s_mul_i32 s5, s5, {64*18432}\ns_add_u32 s{SQ[t]}, s44, s5")
    if o["rf"] >= 0:
        a("s_getpc_b64 s[6:7]")
        a.label("L_pc2")
        a(f"""
        s_and_b32 s5, s4, 1
        s_lshl_b32 s5, s5, 2
        s_add_u32 s5, s5, s43            ; piece 0..7
        s_lshl_b32 s3, s5, 10
        s_cmp_lt_u32 s5, 1
        s_cselect_b32 s5, 0, L_c2-L_p2-1024
        s_add_u32 s3, s3, s5
        s_add_u32 s3, s3, L_p2-L_pc2
        v_add_u32 v6, s3, v28
        v_min_u32 v6, L_last-L_pc2, v6
        v_mov_b32 v7, 0
        v_lshl_add_u64 v[6:7], v[6:7], 0, s[6:7]
        v_and_b32 v6, -16, v6
        """)
    setup_done[0] = True
    ltok = {}; wtok = {}
    SC = [56, 60]; stok = {}
    def tbase(t):
        if pt:
            a(f"s_bfe_u32 s5, s41, {0x20000 + 4*t + 1:#x}\nv_lshl_add_u32 v23, s5, 9, v26")
            return
        a(f"s_bfe_u32 s5, s41, {0x20000 + 4*t + 1:#x}\nv_lshl_add_u32 v24, s5, 12, v29\nv_lshl_add_u32 v25, s5, 12, v29")
    if pt: a(f"v_mov_b32 v24, v29\nv_mov_b32 v25, v29\nv_lshlrev_b32 v26, 2, v29\nv_add_u32 v26, {SCL}, v26")
    tbase(0)
    V(o["lead"] + o["hold0"] - (8 if cx else 9))
    barrier(True)
    def do_bar(t):
        if not cx:
            while t not in xtok or any(v[0] == "x" and v[1] == t for v in vl):
                assert can_V(); V(); credit[0] -= 1
            vm.wait(xtok[t])
        if t == 7:
            while can_V(): V()
        lg.wait(wtok[t])
        barrier(STB(t)); bar_done[0] = t
    credit = [-float(o["hold0"])]
    ES = o["estep"]; NS = 8 // ES
    cu, cw, cv = o["cu"], o["cw"], o["cv"]
    def fmas(t, es):
        while (t, es[-1]) not in qtok:
            assert can_V(); V(); credit[0] -= 1
        vm.wait(qtok[(t, es[-1])])
        for e in es:
            for i in (0, 2):
                r = QB[t & 1] + 4 * e + i
                a(f"v_fma_f64 v[{r}:{r+1}], v[{r}:{r+1}], s[10:11], v[24:25]")
    def combs(t, hf):
        lg.wait(ltok[(t, 4 * hf + 3)])
        for i in range(4):
            r = 4 * i + 2 * hf
            a(f"v_lshl_add_u64 v[{WV + r}:{WV + r + 1}], v[{LT + r}:{LT + r + 1}], 0, v[{WV + r}:{WV + r + 1}]")
    def look(t, e):
        qb = QB[t & 1]
        for i in range(4):
            off = TAB + (i >> 1) * 128 + (i & 1) * 2
            if e & 1: a(f"ds_read_u16_d16_hi v{LT + 4*i + (e >> 1)}, v{qb + 4*e + i} offset:{off}")
            else:     a(f"ds_read_u16 v{WV + 4*i + (e >> 1)}, v{qb + 4*e + i} offset:{off}")
            ltok[(t, e)] = lg.issue()
        unread.discard((t, e))
    def wri(t, i):
        a(f"ds_write_b128 v22, v[{WV + 4*i}:{WV + 4*i + 3}] offset:{WB + (t & 1) * 16384 + (i & 1) * 1024 + (i >> 1) * 128}")
        wtok[t] = lg.issue()
    def sread(t):
        a(f"ds_read_b128 v[{SC[t & 1]}:{SC[t & 1] + 3}], v23")
        stok[t] = lg.issue()
    def paddr(t, p):
        while (t, 2*p + 1) not in qtok:
            assert can_V(); V(); credit[0] -= 1
        vm.wait(qtok[(t, 2*p + 1)])
        r = QB[t & 1] + 8 * p
        for i in (0, 2): a(f"v_lshl_add_u64 v[{r+i}:{r+i+1}], v[{r+4+i}:{r+5+i}], 4, v[{r+i}:{r+i+1}]")
        for i in (0, 2): a(f"v_fma_f64 v[{r+i}:{r+i+1}], v[{r+i}:{r+i+1}], s[10:11], v[24:25]")
    def plook(t, p):
        r = QB[t & 1] + 8 * p
        for i in range(4):
            a(f"ds_read_b32 v{WV + 4*i + p}, v{r + i}")
            ltok[(t, p)] = lg.issue()
        unread.discard((t, 2*p)); unread.discard((t, 2*p + 1))
    def pscale(t, p, hf):
        lg.wait(max(ltok[(t, p)], stok[t]))
        for i in (2*hf, 2*hf + 1):
            a(f"v_fma_mix_f32 v{LT + 2*i}, v{WV + 4*i + p}, v{SC[t & 1] + i}, 0 op_sel_hi:[1,0,0]")
            a(f"v_fma_mix_f32 v{LT + 2*i + 1}, v{WV + 4*i + p}, v{SC[t & 1] + i}, 0 op_sel:[1,0,0] op_sel_hi:[1,0,0]")
        for i in (2*hf, 2*hf + 1):
            a(f"v_cvt_pk_bf16_f32 v{WV + 4*i + p}, v{LT + 2*i}, v{LT + 2*i + 1}")
    unread.update((t, e) for t in range(8) for e in range(8))
    dfr = lambda t: 0 if t == 7 else (o["defer0"] if t == 0 else o["defer"])
    for t in range(8):
        ops = []
        if t == o["ppoff"]: ops.append((0, lambda: a("s_setprio 0")))
        if t == o["ppon"]: ops.append((0, lambda: a("s_setprio 1")))
        if pt:
            cs = o["cs"]
            if t == 0: ops.append((cu, lambda: sread(0)))
            for p in range(4):
                ops.append((4 * cv, lambda p=p: paddr(t, p)))
                ops.append((4 * cu, lambda p=p: plook(t, p)))
                if p == 0 and t < 7:
                    ops.append((4 + cv + cu, lambda: (tbase(t + 1), sread(t + 1))))
                if t > 0 and p + 1 == dfr(t - 1): ops.append((30, lambda: do_bar(t - 1)))
                if p > 0:
                    for hf in range(2): ops.append((6 * cs, lambda p=p, hf=hf: pscale(t, p - 1, hf)))
            ops.append((6 * cs, lambda: pscale(t, 3, 0)))
            ops.append((cw, lambda: wri(t, 0)))
            ops.append((6 * cs, lambda: pscale(t, 3, 1)))
            for i in range(1, 4): ops.append((cw, lambda i=i: wri(t, i)))
        for s in range(0 if pt else NS):
            es = list(range(s * ES, (s + 1) * ES))
            ops.append((2 * ES * cv, lambda es=es: fmas(t, es)))
            for e in es: ops.append((4 * cu, lambda e=e: look(t, e)))
            if t > 0 and s + 1 == dfr(t - 1): ops.append((30, lambda: do_bar(t - 1)))
        if not pt:
            ops.append((4 * cv, lambda: combs(t, 0)))
            if t < 7: ops.append((4 + 2*cv, lambda: tbase(t + 1)))
            ops.append((30 + 4 * cv, lambda: combs(t, 1)))
            for i in range(4): ops.append((cw, lambda i=i: wri(t, i)))
        if not dfr(t): ops.append((30, lambda: do_bar(t)))
        tot = sum(c for c, _ in ops)
        nv = nvs[t + 1] if t < 7 else o["n7"]
        for c, fn in ops:
            while credit[0] >= 0.5 and can_V():
                V(); credit[0] -= 1
            fn()
            credit[0] += c * nv / tot
    if o["ppoff"] == 8 or o["ppon"] < 8: a("s_setprio 0")
    a.label("L_p2")
    assert len(vl) == 4 * NP - n_early, (len(vl), n_early)
    for b in range(7, LB):
        lastn = 0
        for _ in range(plan[b]):
            assert can_V()
            if o["skipd"] and vl[0][1] == NP - 1: lastn += 1
            else: V()
        need = max([p for p in range(NP) if opener(p) == b + 1] + [-1])
        if lastn:
            if need >= 0: vm.wait(ptok[need])
            a(f"s_cmp_ge_u32 s37, 2\ns_cbranch_scc1 L_sk{b}")
            n0 = vm.n
            V(lastn)
            vm.n = n0; ptok[NP - 1] = n0 + 1
            a.label(f"L_sk{b}")
        elif need == NP - 1 and o["skipd"]: a("s_waitcnt vmcnt(0)")
        elif need >= 0: vm.wait(ptok[need])
        barrier(STB(b + 1)); bar_done[0] = b + 1
    assert not vl
    a.label("L_pdone")
    if stamps:
        stamp(); a("s_waitcnt vmcnt(0)"); stamp()
    write_stamps(16, "L_ps")
    a.label("L_end")
    a("s_endpgm")
    a.label("L_idle")
    if o["xp2"] and o["idle"]:
        a("s_lshr_b32 s42, s42, 6\ns_cmp_ge_u32 s42, 4\ns_cselect_b32 s4, 32, s4\ns_cmp_ge_u32 s4, 32\ns_cbranch_scc1 L_end")
        a("s_mov_b32 s23, 0x00020000\nv_and_b32 v1, 63, v0\ns_waitcnt lgkmcnt(0)")
        xp2(a)
    a("s_endpgm")
    if o.get("verbose"): print("open", [opener(p) for p in range(NP)], "plan", [plan[b] for b in range(7, LB)], "pav", [PAV(p) for p in range(NP)], "backlog", backlog, nvs, file=sys.stderr)
    return wrap(a.text() + ca.text(), 256, 512, LDS_BYTES, vgpr=256, sgpr=102, accum=128)

if __name__ == "__main__":
    out = sys.argv[1]
    kw = {}
    for x in sys.argv[2:]:
        k, v = x.split("=", 1)
        kw[k] = type(DEF.get(k, 0))(v)
    open(out, "w").write(gen(**kw))
```
